```python
import torch

def _softmax(x, axis=-1):
    return torch.softmax(x, dim=axis)

def _gelu(x):
    return torch.nn.functional.gelu(x, approximate='tanh')

def _silu(x):
    return torch.nn.functional.silu(x)

def _sigmoid(x):
    return torch.sigmoid(x)

def _layernorm(x, axis=-1, eps=1e-05):
    m = x.mean(dim=axis, keepdim=True)
    v = x.var(dim=axis, keepdim=True, unbiased=False)
    return (x - m) / torch.sqrt(v + eps)

def _scatter_add(tgt, idx, src, axis=0):
    return tgt.clone().index_add_(axis, idx, src)

def _segment_sum(src, seg, n):
    out = torch.zeros((n,) + src.shape[1:], dtype=src.dtype)
    return out.index_add_(0, seg, src)

def _pad(x, pw):
    flat = tuple((v for pair in reversed(pw) for v in pair))
    return torch.nn.functional.pad(x, flat)
kernel_name = 'adaLN_cond__sliding_local_dilated__glu_gated_bilinear__prompt'

def setup_inputs():

    _w = lambda a: (lambda t: t.to(torch.bfloat16) if t.is_floating_point() else t)(torch.as_tensor(a))

    def _A_setup():
        B, S, D = (1, 2048, 640)
        return {'x': _w((lambda *s: torch.randn(*s, dtype=torch.bfloat16) * 0.05)(B, S, D)), 'wqkv': _w((lambda *s: torch.randn(*s, dtype=torch.bfloat16) * 0.05)(D, 3 * D)), 'wo': _w((lambda *s: torch.randn(*s, dtype=torch.bfloat16) * 0.05)(D, D))}
    _A_in = _A_setup()

    def _B_setup():
        B, S, D, F = (1, 2048, 640, 1728)
        return {'x': _w((lambda *s: torch.randn(*s, dtype=torch.bfloat16) * 0.05)(B, S, D)), 'w_gate': _w((lambda *s: torch.randn(*s, dtype=torch.bfloat16) * 0.8)(D, F) * D ** (-0.5)), 'w_up': _w((lambda *s: torch.randn(*s, dtype=torch.bfloat16) * 0.8)(D, F) * D ** (-0.5)), 'w_down': _w((lambda *s: torch.randn(*s, dtype=torch.bfloat16) * 0.8)(F, D) * F ** (-0.5))}
    _B_in = _B_setup()
    return {'A_x': _A_in['x'], 'A_wqkv': _A_in['wqkv'], 'A_wo': _A_in['wo'], 'B_x': _B_in['x'], 'B_w_gate': _B_in['w_gate'], 'B_w_up': _B_in['w_up'], 'B_w_down': _B_in['w_down'], 'c': _w((lambda *s: torch.randn(*s, dtype=torch.bfloat16) * 0.1)(1, 640) * 8.0), 'w_mod': _w((lambda *s: torch.randn(*s, dtype=torch.bfloat16) * 0.1)(640, 6 * 640) * 640 ** (-0.5) * 8.0)}

def reference(A_x, A_wqkv, A_wo, B_x, B_w_gate, B_w_up, B_w_down, c, w_mod):

    def _A_ref(x, wqkv, wo):
        B, S, D = x.shape
        H = 32
        Dh = D // H
        W, dil = (8, 2)
        qkv = (lambda x, *d: x.permute(*d))((x @ wqkv).reshape(B, S, 3, H, Dh), 2, 0, 3, 1, 4)
        q, k, v = (qkv[0], qkv[1], qkv[2])
        scale = Dh ** (-0.5)
        pos = torch.arange(S)
        off = torch.arange(W) * dil
        idx = pos[:, None] - off[None, :]
        mask = idx >= 0
        idx_c = torch.where(mask, idx, 0).reshape(-1)
        kg = k[:, :, idx_c, :].reshape(B, H, S, W, Dh)
        vg = v[:, :, idx_c, :].reshape(B, H, S, W, Dh)
        logits = torch.einsum('bhsd,bhswd->bhsw', q, kg) * scale
        logits = torch.where(mask[None, None, :, :], logits, -1000000000.0)
        attn = _softmax(logits, axis=-1)
        o = torch.einsum('bhsw,bhswd->bhsd', attn, vg)
        return (lambda x, *d: x.permute(*d))(o, 0, 2, 1, 3).reshape(B, S, D) @ wo

    def _B_ref(x, w_gate, w_up, w_down):
        g = torch.einsum('bsd,df->bsf', x, w_gate)
        u = torch.einsum('bsd,df->bsf', x, w_up)
        h = g * u
        return torch.einsum('bsf,fd->bsd', h, w_down)
    x = A_x
    mod = (_silu(c) @ w_mod).reshape(c.shape[0], 6, 1, -1)
    sa, ca, ga, sb, cb, gb = (mod[:, 0].clone(), mod[:, 1].clone(), mod[:, 2].clone(), mod[:, 3].clone(), mod[:, 4].clone(), mod[:, 5].clone())
    h = _layernorm(x, axis=-1) * (1 + ca) + sa
    x = x + ga * _A_ref(h, A_wqkv, A_wo)
    h = _layernorm(x, axis=-1) * (1 + cb) + sb
    x = x + gb * _B_ref(h, B_w_gate, B_w_up, B_w_down)
    return x
```

```python
import re

TRANS = ("v_exp_f32", "v_log_f32", "v_rcp_f32", "v_rsq_f32", "v_sqrt_f32", "v_sin_f32", "v_cos_f32")
_REG = re.compile(r"^-?\|?(?:abs\()?([vas])(?:(\d+)|\[(\d+):(\d+)\])\)?\|?$")


def regs_of(tok):
    tok = tok.strip()
    if tok in ("vcc", "exec", "m0"):
        return {(tok, 0)}
    if tok in ("vcc_lo", "vcc_hi"):
        return {("vcc", 0)}
    if tok in ("exec_lo", "exec_hi"):
        return {("exec", 0)}
    m = _REG.match(tok)
    if not m:
        return set()
    k = m.group(1)
    if m.group(2) is not None:
        return {(k, int(m.group(2)))}
    return {(k, i) for i in range(int(m.group(3)), int(m.group(4)) + 1)}


class Ins:
    def __init__(self, text):
        self.text = text
        t = text.split(";")[0].strip()
        self.label = t[:-1] if t.endswith(":") else None
        self.directive = t.startswith(".") and not self.label
        self.op = ""
        self.w, self.r = set(), set()
        self.a = self.b = self.c = set()
        self.kind = "none"
        self.states = 0
        self.target = None
        if self.label or self.directive or not t:
            return
        parts = t.split(None, 1)
        self.op = op = parts[0]
        rest = parts[1] if len(parts) > 1 else ""
        toks = [x.strip() for x in rest.split(",")] if rest else []
        mods = ""
        if toks:
            last = toks[-1].split()
            toks[-1] = last[0] if last else ""
            mods = " ".join(last[1:])
        self.mods = mods
        R = [regs_of(x) for x in toks]
        self.states = 1
        if op == "s_nop":
            self.kind = "salu"
            self.states = int(toks[0], 0) + 1
        elif op.startswith("s_cbranch") or op == "s_branch":
            self.kind = "branch"
            self.target = toks[0]
        elif op.startswith("s_"):
            self.kind = "salu"
            if op.startswith(("s_cmp", "s_waitcnt", "s_barrier", "s_endpgm", "s_setprio", "s_bitcmp")):
                for x in R: self.r |= x
            else:
                self.w = set(R[0]) if R else set()
                for x in R[1:]: self.r |= x
                if "saveexec" in op:
                    self.w |= {("exec", 0)}
        elif op.startswith("v_mfma"):
            self.kind = "mfma"
            self.w = R[0]; self.a, self.b, self.c = R[1], R[2], R[3]
            self.r = R[1] | R[2] | R[3]
        elif op.startswith("v_"):
            self.kind = "valu"
            self.w = set(R[0])
            srcs = R[1:]
            if re.match(r"v_(add|sub|subrev|addc|subb)_co_", op):
                self.w |= R[1]; srcs = R[2:]
            for x in srcs: self.r |= x
            if op.startswith(("v_fmac", "v_dot2c", "v_pk_fmac")) or "dpp" in op:
                self.r |= R[0]
            if op.startswith("v_permlane") and "swap" in op:
                self.w |= R[1]; self.r |= R[0]
        elif op.startswith(("buffer_", "global_")):
            self.kind = "vmem"
            self.lds = "lds" in mods.split() or "_lds_" in op
            if "load" in op and not self.lds:
                self.w = R[0]
                for x in R[1:]: self.r |= x
            else:
                for x in R: self.r |= x
            if self.lds:
                self.r |= {("m0", 0)}
            self.wide = None
            if "store" in op and op.endswith(("x3", "x4")):
                self.wide = R[0] if op.startswith("buffer_") else R[1]
        elif op.startswith("ds_"):
            self.kind = "ds"
            if op.startswith(("ds_read", "ds_bpermute", "ds_permute", "ds_swizzle")):
                self.w = R[0]
                for x in R[1:]: self.r |= x
            else:
                for x in R: self.r |= x
        else:
            raise ValueError("unknown instruction: " + text)


def _isv(s):
    return {x for x in s if x[0] in "va" and len(x[0]) == 1}


def _iss(s):
    return {x for x in s if x[0] in ("s", "vcc")}


def need(p, c):
    n = 0
    if p.kind == "valu":
        sw = _iss(p.w)
        vw = _isv(p.w)
        if sw:
            if c.kind == "vmem" and sw & c.r: n = max(n, 5)
            if c.kind == "valu" and sw & c.r: n = max(n, 4 if c.op.startswith(("v_readlane", "v_writelane")) else 2)
            if c.kind in ("salu", "branch") and (sw & c.r or (c.kind == "branch" and "vcc" in c.op and ("vcc", 0) in sw)): n = max(n, 1)
        if vw:
            if c.kind == "mfma" and vw & c.r: n = max(n, 2)
            if c.kind == "valu" and vw & c.r:
                if c.op.startswith(("v_readfirstlane", "v_readlane")): n = max(n, 1)
                if c.op.startswith("v_permlane") or "dpp" in c.op: n = max(n, 2)
                if p.op.startswith(TRANS): n = max(n, 1)
            if p.op.startswith("v_dot2") and c.kind in ("valu", "mfma", "vmem", "ds") and vw & (c.r | c.w):
                if not (c.op == p.op and c.w == p.w): n = max(n, 3)
    elif p.kind == "mfma":
        assert "16x16x32" in p.op
        if c.kind == "mfma":
            if p.w & (c.a | c.b): n = max(n, 8)
            if p.w & c.c and c.c != p.w: n = max(n, 6)
            if p.w & c.w and c.c != p.w: n = max(n, 6)
        elif c.kind in ("valu", "vmem", "ds"):
            if p.w & (c.r | c.w): n = max(n, 8)
            if c.kind == "valu" and p.c & c.w: n = max(n, 3)
    elif p.kind == "salu":
        if ("m0", 0) in p.w and c.kind == "vmem" and c.lds: n = max(n, 1)
    elif p.kind == "vmem":
        if p.wide and p.wide & c.w: n = max(n, 2 if c.kind in ("valu", "mfma") else 1)
    return n


def pad_hazards(lines):
    ins = [Ins(x) for x in lines]
    changed = True
    total = 0
    while changed:
        changed = False
        labels = {x.label: i for i, x in enumerate(ins) if x.label}
        preds = {i: [] for i in range(len(ins))}
        for i, x in enumerate(ins):
            if i + 1 < len(ins) and x.op not in ("s_branch", "s_endpgm"):
                preds[i + 1].append(i)
            if x.target in labels:
                preds[labels[x.target]].append(i)
        out = []
        for i, c in enumerate(ins):
            lack = 0
            if c.states and c.op != "s_nop":
                stack = [(j, 0) for j in preds[i]]
                seen = {}
                while stack:
                    j, d = stack.pop()
                    if d >= 9 or seen.get(j, 99) <= d:
                        continue
                    seen[j] = d
                    p = ins[j]
                    if p.states:
                        lack = max(lack, need(p, c) - d)
                    stack += [(k, d + p.states) for k in preds[j]]
            if lack > 0 and not changed:
                out.append(Ins(f"s_nop {lack-1}"))
                total += 1
                changed = True
            out.append(c)
        ins = out
    return [x.text for x in ins], total


def pad_hazards_fast(lines):
    out = []
    n = 0
    for t in lines:
        c = Ins(t)
        if c.states and c.op != "s_nop":
            d, lack = 0, 0
            for p in reversed(out):
                if d >= 9 or p.op in ("s_branch", "s_endpgm"):
                    break
                if p.states:
                    lack = max(lack, need(p, c) - d)
                d += p.states
            if lack > 0:
                out.append(Ins(f"s_nop {lack-1}"))
                n += 1
        out.append(c)
    res, m = pad_hazards([x.text for x in out])
    return res, n + m


class Asm:
    def __init__(self):
        self.L = []
        self.vm = []
        self.nlab = 0

    def __call__(self, s):
        for x in s.split("\n"):
            x = x.strip()
            if x:
                self.L.append(x)

    def label(self, base):
        self.nlab += 1
        return f"L_{base}_{self.nlab}"

    def vmem(self, s, tag=None):
        if len(self.vm) >= 60:
            self("s_waitcnt vmcnt(59)")
            del self.vm[:len(self.vm) - 59]
        self(s)
        self.vm.append(tag)

    def wait_vm(self, pred):
        if not callable(pred):
            tags = pred if isinstance(pred, (set, list)) else [pred]
            pred = lambda t: t in tags
        idx = max((i for i, t in enumerate(self.vm) if pred(t)), default=-1)
        if idx >= 0:
            n = len(self.vm) - 1 - idx
            self(f"s_waitcnt vmcnt({min(n, 63)})")
            del self.vm[:idx + 1]

    def wait_vm_all(self):
        self("s_waitcnt vmcnt(0)")
        self.vm = []

    def text(self):
        lines, n = pad_hazards_fast(self.L)
        self.npad = n
        return "\n".join(x if x.endswith(":") else "    " + x for x in lines)
```

```python
from gen import *

MF = "v_mfma_f32_16x16x32_bf16"
G_P1, G_WO, G_GA, G_GB, G_DN = 0, 20, 33, 53, 68
G_END = 102


def setup_stream(g):
    a = g.a
    g.add_groups(sBQ, 20, lambda k: (vDma, vDmaV[0]))
    g.add_groups(sBO, 13, lambda k: (vDma, vDma) if k < 12 else (vDmaV[1], vDmaV[1]))
    g.add_groups(sBG, 35, lambda k: (vDma, vDma) if k < 20 else (240 + (k - 20) % 3,) * 2)
    g.add_groups(sBD, 34, lambda k: (vDma, vDma) if k < 33 else (vDmaV[2], vDmaV[2]))
    a(f"v_and_b32 v{vT}, 0xffffff7f, v{vDma}")
    a(f"v_cmp_le_u32 vcc, 192, v0")
    a(f"v_cndmask_b32 v{vDmaV[0]}, v{vDma}, v{vT}, vcc")
    a(f"v_mov_b32 v{vT}, {OOB}")
    a(f"v_cndmask_b32 v{vDmaV[2]}, v{vDma}, v{vT}, vcc")
    a(f"v_cmp_le_u32 vcc, 128, v0")
    a(f"v_cndmask_b32 v{vDmaV[1]}, v{vDma}, v{vT}, vcc")
    for r in range(3):
        a(f"s_add_u32 s{T[0]}, s{sW}, {r}")
        a(f"s_cmp_eq_u32 s{T[0]}, 2")
        a(f"s_cselect_b32 s{T[1]}, 6, 99")
        a(f"s_cmp_eq_u32 s{T[0]}, 5")
        a(f"s_cselect_b32 s{T[1]}, 6, s{T[1]}")
        a(f"s_cmp_ge_u32 s{sCS}, s{T[1]}")
        a(f"s_cselect_b32 s{T[1]}, {OOB}, 0")
        a(f"v_add_u32 v{240+r}, s{T[1]}, v{vDma}")


def poll_group(g):
    a = g.a
    a(f"s_lshl_b32 s{T[0]}, s{sI}, 4")
    a(f"v_add_u32 v{vPoll}, s{T[0]}, v{vM}")
    a(f"v_lshlrev_b32 v{vPoll}, 7, v{vPoll}")


def chain(loads):
    return loads


def p1(g):
    a = g.a
    vH0, vH1 = 244, 248
    acc = lambda mt, t: vAcc + (mt * 8 + t) * 4
    accH = vAcc + 64
    a(f"s_lshl_b32 s{T[0]}, s{sI}, 4")
    a(f"s_sub_u32 s{T[0]}, s{T[0]}, 2")
    a(f"v_min_u32 v{vPoll}, 17, v{vLane}")
    a(f"v_add_u32 v{vPoll}, s{T[0]}, v{vPoll}")
    a(f"v_max_i32 v{vPoll}, 0, v{vPoll}")
    a(f"v_lshlrev_b32 v{vPoll}, 7, v{vPoll}")
    g.poll(EV_XH)
    g.stamp()
    sXb = T[3]
    a(f"s_mul_i32 s{sXb}, s{sMT2}, 20480")
    a(f"s_add_u32 s{sXb}, s{sXb}, {XH}")
    a(f"s_mul_i32 s{T[0]}, s{sI}, {8*20480}")
    a(f"s_add_u32 s{T[0]}, s{T[0]}, {XH - 20480}")
    a(f"s_cmp_eq_u32 s{sI}, 0")
    a(f"s_cselect_b32 s{T[0]}, {OOB}, s{T[0]}")
    a(f"s_lshl_b32 s{T[1]}, s{sW}, 10")
    a(f"s_add_u32 s{T[0]}, s{T[0]}, s{T[1]}")
    for t in range(5):
        a(f"s_add_u32 m0, s{T[1]}, {LDS_H + t*4096}")
        a("s_nop 0")
        a.vmem(f"buffer_load_dwordx4 v{vL16}, {srd(S_WS)}, s{T[0]} offen sc1 lds", "halo")
        if t < 4:
            a(f"s_add_u32 s{T[0]}, s{T[0]}, 4096")
    xl = [g.aload((ks * 2 + mt) * 4, sXb, mt * 20480 + ks * 1024, ("x", ks)) for ks in range(20) for mt in range(2)]
    for f in xl[:16]:
        f()
    xl = xl[16:]
    g.divmod_v(vT + 1, vT + 2, vLane, 10)
    a(f"v_min_u32 v{vT+1}, 2, v{vT+1}")
    a(f"v_mul_u32_u24 v{vT+1}, 80, v{vT+1}")
    a(f"s_lshr_b32 s{T[0]}, s{sJ}, 1")
    a(f"s_mul_i32 s{T[0]}, s{T[0]}, 10")
    a(f"v_add3_u32 v{vPoll}, v{vT+1}, v{vT+2}, s{T[0]}")
    a(f"v_lshlrev_b32 v{vPoll}, 7, v{vPoll}")
    a(f"s_lshl_b32 s{T[0]}, s{sW}, 2")
    a(f"s_lshr_b32 s{T[1]}, 0x0610, s{T[0]}")
    a(f"s_and_b32 s{T[1]}, s{T[1]}, 15")
    a(f"s_lshl_b32 s{T[4]}, s{T[1]}, 10")
    a(f"s_lshr_b32 s{T[2]}, 0x4754, s{T[0]}")
    a(f"s_and_b32 s{T[2]}, s{T[2]}, 15")
    a(f"s_lshl_b32 s{T[5]}, s{T[2]}, 10")
    for k, b in enumerate((vL16, vL16b, vL16c)):
        a(f"v_add_u32 v{vH0+k}, s{T[4]}, v{b}")
        a(f"v_add_u32 v{vH1+k}, s{T[5]}, v{b}")
    vHv0, vHv1 = 247, 251
    a(f"s_lshl_b32 s{T[1]}, s{T[1]}, 6")
    a(f"s_add_u32 s{T[1]}, s{T[1]}, {T_UV}")
    a(f"v_lshlrev_b32 v{vHv0}, 4, v{vG}")
    a(f"v_add_u32 v{vHv0}, s{T[1]}, v{vHv0}")
    a(f"s_lshl_b32 s{T[2]}, s{T[2]}, 6")
    a(f"s_add_u32 s{T[2]}, s{T[2]}, {T_UV}")
    a(f"v_lshlrev_b32 v{vHv1}, 2, v{vM}")
    a(f"v_add_u32 v{vHv1}, s{T[2]}, v{vHv1}")
    a.wait_vm("halo")
    g.poll(EV_WQ)
    g.stamp()
    g.g_limit = G_WO
    g.issue_groups(3)
    vV = vT + 8
    a(f"v_and_b32 v{vT+4}, 127, v0")
    a(f"v_lshlrev_b32 v{vT+4}, 2, v{vT+4}")
    a(f"s_mul_i32 s{T[4]}, s{sJ}, 5120")
    a(f"s_add_u32 s{T[4]}, s{T[4]}, {V1P}")
    a(f"s_add_u32 s{T[5]}, s{T[4]}, 2560")

    def v1load(k):
        def f():
            a.vmem(f"buffer_load_dword v{vV+k}, v{vT+4}, {srd(S_WS)}, s{T[4+k//5]} offen offset:{(k%5)*512} sc1", "v1")
        return f

    def v1sum():
        a.wait_vm("v1")
        for k in range(1, 10):
            a(f"v_add_f32 v{vV}, v{vV}, v{vV+k}")
        a(f"v_add_u32 v{vT+4}, {T_UV}, v{vT+4}")
        g.dsop(f"ds_write_b32 v{vT+4}, v{vV}", "v1w")

    def wgrp():
        if g.can_issue():
            g.issue_half()
    fill = []
    for k in range(len(xl)):
        fill += [wgrp, wgrp, xl[k]] if k % 2 == 0 else [xl[k]]
    fill += [v1load(k) for k in range(10)]
    reads, ops = [], []
    for ks in range(20):
        r0 = len(reads)
        for t in range(8):
            reads.append(g.ring_addr(ks * 8 + t) + (ks * 8 + t,))
        reads.append((vL16c, LDS_H - 0x20000 + ks * 1024, None))
        reads.append(g.ring_addr(ks * 8, (vH0, vH0 + 1, vH0 + 2), True) + (ks * 8,))
        reads.append(g.ring_addr(ks * 8, (vH1, vH1 + 1, vH1 + 2), True) + (ks * 8,))
        for t in range(8):
            for mt in range(2):
                d = q(acc(mt, t))
                c = d if ks else "0"
                x = q((ks * 2 + mt) * 4, 4, "a")
                tpl = f"{MF} {d}, {x}, {{0}}, {c}" if t in (4, 5, 7) else f"{MF} {d}, {{0}}, {x}, {c}"
                ops.append(([r0 + t], tpl, ("x", ks)))
        ops.append(([r0 + 9, r0 + 8], f"{MF} {q(accH)}, {{0}}, {{1}}, {q(accH) if ks else 0}", None))
        ops.append(([r0 + 8, r0 + 10], f"{MF} {q(accH+4)}, {{0}}, {{1}}, {q(accH+4) if ks else 0}", None))
    g.gemm(reads, ops, 160, fill, every=3, sync_every=1, nb=g.dist + 4)
    v1sum()
    g.wait_ds()
    g.barrier()
    g.stamp()

    vb = vWB
    a(f"v_lshlrev_b32 v{vT}, 4, v{vG}")
    a(f"v_add_u32 v{vT}, {T_UV}, v{vT}")
    a(f"v_lshlrev_b32 v{vT+1}, 2, v{vM}")
    a(f"v_add_u32 v{vT+1}, {T_UV}, v{vT+1}")
    for t in range(8):
        if t in (4, 5, 7):
            a(f"ds_read_b32 v{vb+4*t}, v{vT+1} offset:{64*t}")
        else:
            a(f"ds_read_b128 {q(vb+4*t)}, v{vT} offset:{64*t}")
    a(f"ds_read_b128 {q(vb+32)}, v{vHv0}")
    a(f"ds_read_b32 v{vb+36}, v{vHv1}")
    K = lambda s: 200 + 6 * s
    V = lambda t: 218 + 6 * t
    Q = lambda mt: 104 + 8 * mt
    PH = 120
    g.wait_ds()

    def pack(dst, src, bias, single):
        for h in range(2):
            if single:
                a(f"v_pk_add_f32 {q(src+2*h,2)}, {q(src+2*h,2)}, {q(bias,2)} op_sel_hi:[1,0]")
            else:
                a(f"v_pk_add_f32 {q(src+2*h,2)}, {q(src+2*h,2)}, {q(bias+2*h,2)}")
        for h in range(2):
            a(f"v_cvt_pk_bf16_f32 v{dst+h}, v{src+2*h}, v{src+2*h+1}")
    pack(PH, accH, vb + 32, False)
    pack(PH + 2, accH + 4, vb + 36, True)
    EX = LDS_H - 0x20000
    a(f"v_lshlrev_b32 v{vT}, 3, v{vLane}")
    a(f"s_mul_i32 s{T[0]}, s{sW}, 3072")
    a(f"s_add_u32 s{T[0]}, s{T[0]}, 0x20000")
    a(f"v_add_u32 v{vT+1}, s{T[0]}, v{vT}")
    a(f"s_lshl_b32 s{T[0]}, s{sW}, 9")
    a(f"s_cmp_eq_u32 s{sW}, 3")
    a(f"s_cselect_b32 s{T[0]}, {5*3072}, s{T[0]}")
    a(f"s_add_u32 s{T[0]}, s{T[0]}, 0x20000")
    a(f"v_add_u32 v{vT+2}, s{T[0]}, v{vT}")
    a(f"ds_write_b64 v{vT+2}, {q(PH,2)} offset:{EX}")
    a(f"ds_write_b64 v{vT+2}, {q(PH+2,2)} offset:{EX + 1536}")
    for mt in (1, 0):
        pack(K(1 + mt), acc(mt, 0), vb, False)
        pack(K(1 + mt) + 4, acc(mt, 1), vb + 4, False)
        pack(K(1 + mt) + 2, acc(mt, 6), vb + 24, False)
        pack(V(0) + 2 + 2 * mt, acc(mt, 4), vb + 16, True)
        pack(V(1) + 2 + 2 * mt, acc(mt, 5), vb + 20, True)
        pack(V(2) + 2 + 2 * mt, acc(mt, 7), vb + 28, True)
        if mt == 1:
            for t, r in enumerate((K(2), K(2) + 4, K(2) + 2, V(0) + 4, V(1) + 4, V(2) + 4)):
                a(f"ds_write_b64 v{vT+1}, {q(r,2)} offset:{EX + 3072 + 512*t}")
    a("s_waitcnt lgkmcnt(0)")
    a("s_barrier")
    for t, r in enumerate((K(0), K(0) + 4, K(0) + 2, V(0), V(1), V(2))):
        a(f"ds_read_b64 {q(r,2)}, v{vT+1} offset:{EX + 512*t}")
    m0_, m1_ = vT + 4, vT + 5
    a(f"v_cmp_eq_u32 vcc, 0, v{vG}")
    a(f"v_cndmask_b32 v{m0_}, 0, -1, vcc")
    a(f"v_cmp_eq_u32 vcc, 1, v{vG}")
    a(f"v_cndmask_b32 v{m1_}, 0, -1, vcc")
    for mt in range(2):
        pack(Q(mt), acc(mt, 2), vb + 8, False)
        pack(Q(mt) + 6, acc(mt, 3), vb + 12, False)
        for h in range(2):
            a(f"v_mov_b32 v{Q(mt)+4+h}, 0")
        for h in range(2):
            a(f"v_permlane32_swap_b32 v{K(1+mt)+2+h}, v{Q(mt)+4+h}")
        for h in range(2):
            a(f"v_and_b32 v{Q(mt)+2+h}, v{m0_}, v{Q(mt)+4+h}")
            a(f"v_and_b32 v{Q(mt)+4+h}, v{m1_}, v{Q(mt)+4+h}")
    bias = vT + 8
    a(f"s_cmp_eq_u32 s{sMT2}, 0")
    a(f"s_cselect_b32 s{T[0]}, 0xf149f2ca, 0")
    for r in range(4):
        a(f"v_mov_b32 v{bias+r}, s{T[0]}")
    sPar, sC0, sC1 = 76, 78, 80
    a(f"v_and_b32 v{vT+6}, 1, v{vM}")
    a(f"v_cmp_eq_u32 s[{sPar}:{sPar+1}], 1, v{vT+6}")
    a(f"v_lshl_add_u32 v{vT+7}, v{vG}, 2, v{vT+6}")
    a(f"v_cmp_le_u32 s[{sC0}:{sC0+1}], v{vT+7}, v{vM}")
    a(f"v_add_u32 v{vT+7}, 2, v{vT+7}")
    a(f"v_cmp_le_u32 s[{sC1}:{sC1+1}], v{vT+7}, v{vM}")
    a(f"v_cvt_f32_u32 v{vT+6}, v{vT+6}")
    a(f"v_sub_f32 v{vT+7}, 1.0, v{vT+6}")
    S = lambda c, t: vAcc + 8 * c + 4 * t
    combos = [(1, 0), (1, 1), (0, 0), (0, 1)]
    for c, (mt, h) in enumerate(combos):
        if c == 2:
            a("s_waitcnt lgkmcnt(0)")
        qq = q(Q(mt) + 4 * h)
        a(f"{MF} {q(S(c,0))}, {q(K(mt) + 2*h)}, {qq}, {q(bias) if mt == 0 else 0}")
        a(f"{MF} {q(S(c,1))}, {q(K(mt+1) + 2*h)}, {qq}, 0")
    W = lambda c: vWB + 8 * c
    P = lambda c: vAcc + 32 + 4 * c
    SC = "0x3ea52b5c"
    a(f"s_mov_b32 s{T[0]}, {SC}")
    R4 = range(4)
    for e, sc in ((0, sC0), (1, sC1)):
        for c in R4:
            a(f"v_cndmask_b32 v{W(c)+e}, v{S(c,0)+2*e}, v{S(c,0)+2*e+1}, s[{sPar}:{sPar+1}]")
            a(f"v_cndmask_b32 v{W(c)+2}, v{S(c,1)+2*e}, v{S(c,1)+2*e+1}, s[{sPar}:{sPar+1}]")
            a(f"v_cndmask_b32 v{W(c)+e}, v{W(c)+e}, v{W(c)+2}, s[{sc}:{sc+1}]")

    def allreduce(op):
        for sw in ("v_permlane16_swap_b32", "v_permlane32_swap_b32"):
            for c in R4:
                a(f"v_mov_b32 v{W(c)+3}, v{W(c)+2}")
            for c in R4:
                a(f"{sw} v{W(c)+2}, v{W(c)+3}")
            for c in R4:
                a(f"{op} v{W(c)+2}, v{W(c)+2}, v{W(c)+3}")
    for c in R4:
        a(f"v_max_f32 v{W(c)+2}, v{W(c)}, v{W(c)+1}")
    allreduce("v_max_f32")
    for c in R4:
        for e in range(2):
            a(f"v_sub_f32 v{W(c)+e}, v{W(c)+e}, v{W(c)+2}")
            a(f"v_mul_f32 v{W(c)+e}, s{T[0]}, v{W(c)+e}")
    for c in R4:
        for e in range(2):
            a(f"v_exp_f32 v{W(c)+e}, v{W(c)+e}")
    for c in R4:
        a(f"v_add_f32 v{W(c)+2}, v{W(c)}, v{W(c)+1}")
    allreduce("v_add_f32")
    for c in R4:
        a(f"v_rcp_f32 v{W(c)+2}, v{W(c)+2}")
    for c in R4:
        a(f"v_mul_f32 v{W(c)+3}, v{W(c)+2}, v{vT+6}")
        a(f"v_mul_f32 v{W(c)+2}, v{W(c)+2}, v{vT+7}")
    for c in R4:
        for e, sc in ((0, sC0), (1, sC1)):
            a(f"v_mul_f32 v{W(c)+4}, v{W(c)+e}, v{W(c)+2}")
            a(f"v_mul_f32 v{W(c)+5}, v{W(c)+e}, v{W(c)+3}")
            a(f"v_cvt_pk_bf16_f32 v{W(c)+4}, v{W(c)+4}, v{W(c)+5}")
            a(f"v_cndmask_b32 v{P(c)+e}, v{W(c)+4}, 0, s[{sc}:{sc+1}]")
            a(f"v_cndmask_b32 v{P(c)+2+e}, 0, v{W(c)+4}, s[{sc}:{sc+1}]")
    for c, (mt, h) in enumerate(combos):
        a(f"{MF} {q(S(c,0))}, {q(V(h) + 2*mt)}, {q(P(c))}, 0")
        a(f"{MF} {q(S(c,1))}, {q(V(2) + 2*mt)}, {q(P(c))}, 0")
    a(f"s_mul_i32 s{T[0]}, s{sMT2}, 20480")
    a(f"s_add_u32 s{T[0]}, s{T[0]}, {OP}")
    a(f"s_lshl_b32 s{T[1]}, s{sJ}, 10")
    a(f"s_add_u32 s{T[1]}, s{T[1]}, s{T[0]}")
    a(f"s_lshl_b32 s{T[2]}, s{sJ}, 8")
    a(f"s_add_u32 s{T[2]}, s{T[2]}, s{T[0]}")
    a(f"s_add_u32 s{T[2]}, s{T[2]}, 16384")
    a(f"v_mov_b32 v{vT}, {OOB}")
    a(f"v_cmp_eq_u32 vcc, 0, v{vG}")
    a(f"v_cndmask_b32 v{vT}, v{vT}, v{vL16}, vcc")
    for mt in (1, 0):
        c0 = 0 if mt == 1 else 2
        o = vWB + 12 * mt
        for h in range(2):
            for d in range(2):
                a(f"v_cvt_pk_bf16_f32 v{o+2*h+d}, v{S(c0+h,0)+2*d}, v{S(c0+h,0)+2*d+1}")
        a(f"s_add_u32 s{T[3]}, s{T[1]}, {mt*20480}")
        a.vmem(f"buffer_store_dwordx4 {q(o)}, v{vL16}, {srd(S_WS)}, s{T[3]} offen sc1", "stO")
        for d in range(2):
            a(f"v_cvt_pk_bf16_f32 v{o+4+d}, v{S(c0,1)+2*d}, v{S(c0,1)+2*d+1}")
            a(f"v_cvt_pk_bf16_f32 v{o+8+d}, v{S(c0+1,1)+2*d}, v{S(c0+1,1)+2*d+1}")
        for d in range(2):
            a(f"v_permlane16_swap_b32 v{o+8+d}, v{o+6+d}")
        a(f"s_add_u32 s{T[3]}, s{T[2]}, {mt*20480}")
        a.vmem(f"buffer_store_dwordx4 {q(o+4)}, v{vT}, {srd(S_WS)}, s{T[3]} offen sc1", "stO")
    g.publish(EV_O, "stO")
    g.stamp()


def small_gemm(g, g0, nks, areg, tags, fill, every):
    reads, ops = [], []
    for ks in range(nks):
        for t in range(5):
            f = g0 * 8 + ks * 5 + t
            reads.append(g.ring_addr(f) + (f,))
            d = q(vAcc + 4 * t)
            ops.append(([len(reads) - 1], f"{MF} {d}, {{0}}, {q(areg(ks),4,'a')}, {d if ks else 0}", tags(ks)))
    return reads, ops


def gate_table(g, base, dst):
    a = g.a
    a(f"v_lshlrev_b32 v{vT}, 5, v{vG}")
    a(f"v_add_u32 v{vT}, {base + 640}, v{vT}")
    a(f"v_and_b32 v{vT+1}, 1, v{vG}")
    a(f"v_lshlrev_b32 v{vT+1}, 5, v{vT+1}")
    a(f"v_lshrrev_b32 v{vT+2}, 1, v{vG}")
    a(f"v_lshl_add_u32 v{vT+1}, v{vT+2}, 4, v{vT+1}")
    a(f"v_add_u32 v{vT+1}, {base + 640 + 256}, v{vT+1}")
    for t in range(4):
        g.dsop(f"ds_read_b128 {q(dst+4*t)}, v{vT} offset:{128*(t//2) + 16*(t%2)}", "gt")
    g.dsop(f"ds_read_b128 {q(dst+16)}, v{vT+1}", "gt")


def residual(g, gate, tmp):
    a = g.a
    for d in range(10):
        a(f"v_lshlrev_b32 v{tmp+2*d}, 16, v{vXr+d}")
        a(f"v_and_b32 v{tmp+2*d+1}, 0xffff0000, v{vXr+d}")
    for d in range(10):
        a(f"v_pk_fma_f32 {q(vAcc+2*d,2)}, {q(vAcc+2*d,2)}, {q(gate+2*d,2)}, {q(tmp+2*d,2)}")


def wo(g):
    a = g.a
    a(f"v_lshlrev_b32 v{vPoll}, 7, v{vLane}")
    g.poll(EV_WD, 4)
    g.epoch_update()
    g.g_limit = G_END
    g.issue_groups(13)
    vU = vT + 8
    a(f"v_lshlrev_b32 v{vT+4}, 2, v0")
    a(f"v_min_u32 v{vT+5}, 191, v0")
    a(f"v_lshlrev_b32 v{vT+5}, 2, v{vT+5}")
    a(f"s_mul_i32 s{T[4]}, s{sJ}, {4*1792}")
    a(f"s_add_u32 s{T[4]}, s{T[4]}, {UV2P}")
    a(f"s_add_u32 s{T[5]}, s{T[4]}, {2*1792}")
    for k in range(4):
        a.vmem(f"buffer_load_dword v{vU+k}, v{vT+4}, {srd(S_WS)}, s{T[4+k//2]} offen offset:{(k%2)*1792} sc1", "uv")
        a.vmem(f"buffer_load_dword v{vU+4+k}, v{vT+5}, {srd(S_WS)}, s{T[4+k//2]} offen offset:{(k%2)*1792+1024} sc1", "uv")
    a.wait_vm("uv")
    for b in (vU, vU + 4):
        for k in range(1, 4):
            a(f"v_add_f32 v{b}, v{b}, v{b+k}")
    a(f"v_add_u32 v{vT+4}, {T_UV}, v{vT+4}")
    a(f"v_add_u32 v{vT+5}, {T_UV}, v{vT+5}")
    a(f"ds_write_b32 v{vT+4}, v{vU}")
    a(f"ds_write_b32 v{vT+5}, v{vU+4} offset:1024")
    gate = 200
    gate_table(g, T_GA, gate)
    g.wait_ds()
    poll_group(g)
    g.poll(EV_O)
    g.stamp()
    sAb = T[3]
    a(f"s_mul_i32 s{sAb}, s{sMT1}, 20480")
    a(f"s_add_u32 s{sAb}, s{sAb}, {OP}")
    al = [g.aload(160 + 4 * ks, sAb, ks * 1024, ("o", ks)) for ks in range(20)]
    for k, f in enumerate(al):
        f.first = k % 4 == 0
    for f in al[:8]:
        f()
    reads, ops = small_gemm(g, G_WO, 20, lambda ks: 160 + 4 * ks, lambda ks: ("o", ks), None, 0)
    g.gemm(reads, ops, G_WO * 8 + 100, al[8:], every=2, sync_every=4)
    g.stamp()
    a.wait_vm("xr")
    tmp = 160
    residual(g, gate, tmp)
    s1, s2 = vT, vT + 1
    a(f"v_add_f32 v{s1}, v{vAcc}, v{vAcc+1}")
    a(f"v_mul_f32 v{s2}, v{vAcc}, v{vAcc}")
    a(f"v_fmac_f32 v{s2}, v{vAcc+1}, v{vAcc+1}")
    for d in range(10):
        a(f"v_cvt_pk_bf16_f32 v{vXr+d}, v{vAcc+2*d}, v{vAcc+2*d+1}")
    a(f"s_mul_i32 s{T[0]}, s{sMT1}, 20480")
    a(f"s_add_u32 s{T[0]}, s{T[0]}, {X2P}")
    a(f"s_lshl_b32 s{T[1]}, s{sCS}, 11")
    a(f"s_add_u32 s{T[1]}, s{T[1]}, s{T[0]}")
    a.vmem(f"buffer_store_dwordx4 {q(vXr)}, v{vL16}, {srd(S_WS)}, s{T[1]} offen sc1", "stX")
    a.vmem(f"buffer_store_dwordx4 {q(vXr+4)}, v{vL16}, {srd(S_WS)}, s{T[1]} offen offset:1024 sc1", "stX")
    h = vT + 4
    for d in range(2):
        a(f"v_mov_b32 v{h+d}, v{vXr+8+d}")
    for d in range(2):
        a(f"v_permlane32_swap_b32 v{h+d}, v{h+2+d}")
    a(f"s_lshl_b32 s{T[1]}, s{sCS}, 9")
    a(f"s_add_u32 s{T[1]}, s{T[1]}, s{T[0]}")
    a(f"s_add_u32 s{T[1]}, s{T[1]}, 16384")
    a(f"v_mov_b32 v{vT+2}, {OOB}")
    a(f"v_cmp_gt_u32 vcc, 32, v{vLane}")
    a(f"v_cndmask_b32 v{vT+3}, v{vT+2}, v{vL16}, vcc")
    a.vmem(f"buffer_store_dwordx4 {q(h)}, v{vT+3}, {srd(S_WS)}, s{T[1]} offen sc1", "stX")
    for d in range(2, 20):
        a(f"v_add_f32 v{s1}, v{s1}, v{vAcc+d}")
        a(f"v_fmac_f32 v{s2}, v{vAcc+d}, v{vAcc+d}")
    for sw in ("v_permlane16_swap_b32", "v_permlane32_swap_b32"):
        a(f"v_mov_b32 v{vT+8}, v{s1}")
        a(f"v_mov_b32 v{vT+9}, v{s2}")
        a(f"{sw} v{s1}, v{vT+8}")
        a(f"{sw} v{s2}, v{vT+9}")
        a(f"v_add_f32 v{s1}, v{s1}, v{vT+8}")
        a(f"v_add_f32 v{s2}, v{s2}, v{vT+9}")
    a(f"v_lshlrev_b32 v{vT+3}, 3, v{vLane}")
    a(f"v_cmp_gt_u32 vcc, 16, v{vLane}")
    a(f"v_cndmask_b32 v{vT+3}, v{vT+2}, v{vT+3}, vcc")
    a(f"s_lshl_b32 s{T[0]}, s{sMT1}, 10")
    a(f"s_lshl_b32 s{T[1]}, s{sCS}, 7")
    a(f"s_add_u32 s{T[0]}, s{T[0]}, s{T[1]}")
    a(f"s_add_u32 s{T[0]}, s{T[0]}, {ST2}")
    a.vmem(f"buffer_store_dwordx2 {q(s1,2)}, v{vT+3}, {srd(S_WS)}, s{T[0]} offen sc1", "stX")
    g.publish(EV_X2, "stX")
    g.stamp()


def gu(g):
    a = g.a
    acc = lambda mt, t: vAcc + (mt * 14 + t) * 4
    g.issue_groups()
    g.poll(EV_X2)
    g.stamp()
    sXb = T[3]
    a(f"s_mul_i32 s{sXb}, s{sMT2}, 20480")
    a(f"s_add_u32 s{sXb}, s{sXb}, {X2P}")
    xl = [g.aload((ks * 2 + mt) * 4, sXb, mt * 20480 + ks * 1024, ("x2", ks)) for ks in range(20) for mt in range(2)]
    for f in xl[:6]:
        f()
    vSt = 244
    a(f"v_lshlrev_b32 v{vT+4}, 8, v{vG}")
    a(f"v_lshl_add_u32 v{vT+4}, v{vM}, 3, v{vT+4}")
    a(f"s_lshl_b32 s{T[4]}, s{sMT2}, 10")
    a(f"s_add_u32 s{T[4]}, s{T[4]}, {ST2}")

    def stload(mt, k):
        def f():
            a.vmem(f"buffer_load_dwordx2 {q(vSt+4*mt+2*k,2)}, v{vT+4}, {srd(S_WS)}, s{T[4]} offen offset:{mt*1024+k*128} sc1", "st")
        return f

    def one_pass(g0, t0, nt, fill, tags, every):
        reads, ops = [], []
        for ks in range(20):
            for t in range(nt):
                f = g0 * 8 + ks * nt + t
                reads.append(g.ring_addr(f) + (f,))
                for mt in range(2):
                    d = q(acc(mt, t0 + t))
                    ops.append(([len(reads) - 1], f"{MF} {d}, {{0}}, {q((ks*2+mt)*4,4,'a')}, {d if ks else 0}", tags(ks)))
        g.gemm(reads, ops, g0 * 8 + 20 * nt, fill, every=every, sync_every=2)

    def epilogue(tiles, out):
        tb = vWB
        a(f"v_lshlrev_b32 v{vT}, 4, v{vG}")
        a(f"v_add_u32 v{vT}, {T_UV}, v{vT}")
        for i, t in enumerate(tiles):
            for k in range(2):
                g.dsop(f"ds_read_b128 {q(tb+16*i+4*k)}, v{vT} offset:{(2*t+k)*64}", ("e", i))
                g.dsop(f"ds_read_b128 {q(tb+16*i+8+4*k)}, v{vT} offset:{896+(2*t+k)*64}", ("e", i))
        c = vT + 8
        for i, t in enumerate(tiles):
            g.wait_ds({("e", i)})
            for mt in range(2):
                st = q(vSt + 4 * mt, 2)
                for d in range(4):
                    a(f"v_pk_fma_f32 {q(c+2*d,2)}, {q(tb+16*i+2*d,2)}, {st}, {q(tb+16*i+8+2*d,2)} op_sel_hi:[1,0,1]")
                for d in range(4):
                    a(f"v_pk_fma_f32 {q(c+2*d,2)}, {q(acc(mt,2*t)+2*d,2)}, {st}, {q(c+2*d,2)} op_sel:[0,1,0] op_sel_hi:[1,1,1]")
                for d in range(2):
                    a(f"v_pk_mul_f32 {q(c+2*d,2)}, {q(c+2*d,2)}, {q(c+4+2*d,2)}")
                for d in range(2):
                    a(f"v_cvt_pk_bf16_f32 v{out(mt,i)+d}, v{c+2*d}, v{c+2*d+1}")

    fill = xl[6:] + [stload(mt, k) for mt in range(2) for k in range(2)]
    one_pass(G_GA, 0, 8, fill, lambda ks: ("x2", ks), 3)
    g.stamp()
    a.wait_vm("st")
    for mt in range(2):
        b = vSt + 4 * mt
        a(f"v_add_f32 v{b}, v{b}, v{b+2}")
        a(f"v_add_f32 v{b+1}, v{b+1}, v{b+3}")
        for sw in ("v_permlane16_swap_b32", "v_permlane32_swap_b32"):
            a(f"v_mov_b32 v{b+2}, v{b}")
            a(f"v_mov_b32 v{b+3}, v{b+1}")
            a(f"{sw} v{b}, v{b+2}")
            a(f"{sw} v{b+1}, v{b+3}")
            a(f"v_add_f32 v{b}, v{b}, v{b+2}")
            a(f"v_add_f32 v{b+1}, v{b+1}, v{b+3}")
        g.ln_finish(b, b + 1, vT)
    o = vT + 16
    epilogue([0, 1, 2, 3], lambda mt, i: o + 8 * mt + 2 * i)
    sH = T[4]
    a(f"s_mul_i32 s{sH}, s{sMT2}, {54*1024}")
    a(f"s_add_u32 s{sH}, s{sH}, {HH}")
    a(f"s_lshl_b32 s{T[0]}, s{sJ}, 11")
    a(f"s_add_u32 s{T[0]}, s{T[0]}, s{sH}")
    for mt in range(2):
        for k in range(2):
            a.vmem(f"buffer_store_dwordx4 {q(o+8*mt+4*k)}, v{vL16}, {srd(S_WS)}, s{T[0]} offen offset:{k*1024} sc1", "stH")
        a(f"s_add_u32 s{T[0]}, s{T[0]}, {54*1024}")
    g.publish(EV_HA, "stH")
    g.stamp()
    one_pass(G_GB, 8, 6, [], lambda ks: None, 3)
    epilogue([4, 5, 6], lambda mt, i: o + 4 * mt + 2 * i if i < 2 else o + 8 + 2 * mt)
    a(f"s_lshl_b32 s{T[0]}, s{sJ}, 10")
    a(f"s_add_u32 s{T[0]}, s{T[0]}, s{sH}")
    a(f"s_add_u32 s{T[0]}, s{T[0]}, {32*1024}")
    for mt in range(2):
        a.vmem(f"buffer_store_dwordx4 {q(o+4*mt)}, v{vL16}, {srd(S_WS)}, s{T[0]} offen sc1", "stH")
        a(f"s_add_u32 s{T[0]}, s{T[0]}, {54*1024}")
    for d in range(2):
        a(f"v_permlane32_swap_b32 v{o+8+d}, v{o+10+d}")
    a(f"s_lshr_b32 s{T[0]}, s{sJ}, 3")
    a(f"s_mul_i32 s{T[0]}, s{T[0]}, 6")
    a(f"s_add_u32 s{T[0]}, s{T[0]}, s{sCS}")
    a(f"s_lshl_b32 s{T[0]}, s{T[0]}, 9")
    a(f"s_add_u32 s{T[0]}, s{T[0]}, s{sH}")
    a(f"s_add_u32 s{T[0]}, s{T[0]}, {48*1024}")
    a(f"s_cmp_ge_u32 s{sCS}, 6")
    a(f"s_cselect_b32 s{T[0]}, {OOB}, s{T[0]}")
    a(f"v_lshrrev_b32 v{vT}, 5, v{vLane}")
    a(f"v_mul_u32_u24 v{vT}, {54*1024 - 512}, v{vT}")
    a(f"v_add_u32 v{vT}, v{vT}, v{vL16}")
    a.vmem(f"buffer_store_dwordx4 {q(o+8)}, v{vT}, {srd(S_WS)}, s{T[0]} offen sc1", "stH")
    g.publish(EV_HB, "stH")
    g.stamp()


def dn(g):
    a = g.a
    gate = 200
    g.issue_groups()
    gate_table(g, T_GB, gate)
    g.wait_ds()
    g.poll(EV_HB)
    sAb = T[3]
    a(f"s_mul_i32 s{sAb}, s{sMT1}, {54*1024}")
    a(f"s_add_u32 s{sAb}, s{sAb}, {HH}")
    areg = lambda ks: 4 * ks
    al = [g.aload(areg(ks), sAb, ks * 1024, ("h", ks)) for ks in range(54)]
    for k, f in enumerate(al):
        f.first = k % 4 == 0
    for f in al[:8]:
        f()

    def wgrp():
        if g.can_issue():
            g.issue_half()
    fill = []
    for f in al[8:]:
        fill += [f, wgrp]
    reads, ops = small_gemm(g, G_DN, 54, areg, lambda ks: ("h", ks), None, 0)
    g.gemm(reads, ops, G_DN * 8 + 270, fill, every=2, sync_every=2)
    tmp = 160
    residual(g, gate, tmp)
    o = vT + 8
    for d in range(10):
        a(f"v_cvt_pk_bf16_f32 v{o+d}, v{vAcc+2*d}, v{vAcc+2*d+1}")
    a(f"v_mul_u32_u24 v{vT}, 1280, v{vM}")
    a(f"v_lshl_add_u32 v{vT}, v{vG}, 4, v{vT}")
    a(f"s_mul_i32 s{T[0]}, s{sMT1}, {16*1280}")
    a(f"s_mul_i32 s{T[1]}, s{sCS}, 160")
    a(f"s_add_u32 s{T[0]}, s{T[0]}, s{T[1]}")
    a.vmem(f"buffer_store_dwordx4 {q(o)}, v{vT}, {srd(S_OUT)}, s{T[0]} offen", "out")
    a.vmem(f"buffer_store_dwordx4 {q(o+4)}, v{vT}, {srd(S_OUT)}, s{T[0]} offen offset:64", "out")
    for d in range(2):
        a(f"v_permlane32_swap_b32 v{o+8+d}, v{o+10+d}")
    a(f"v_mov_b32 v{vT+2}, {OOB}")
    a(f"v_cmp_gt_u32 vcc, 32, v{vLane}")
    a(f"v_cndmask_b32 v{vT}, v{vT+2}, v{vT}, vcc")
    a.vmem(f"buffer_store_dwordx4 {q(o+8)}, v{vT}, {srd(S_OUT)}, s{T[0]} offen offset:128", "out")


def rest(g):
    setup_stream(g)
    if g.stop < 1:
        return early(g)
    p1(g)
    if g.stop < 2:
        return early(g)
    wo(g)
    if g.stop < 3:
        return
    gu(g)
    if g.stop < 4:
        return
    dn(g)


def early(g):
    a = g.a
    a(f"v_lshlrev_b32 v{vPoll}, 7, v{vLane}")
    g.poll(EV_WD, 4)
    g.epoch_update()
```

```python
import sys
from asmlib import Asm

NAME = "adaLN_cond__sliding_local_dilated__glu_gated_bilinear__prompt"

FLAG = 0x10000
MODP = 0x60000
V1P = 0xB0000
UV2P = 0xD0000
ST2 = 0xF0000
XH = 0x200000
WQ = 0x500000
WOP = 0x800000
WGU = 0x900000
WDP = 0xE00000
OP = 0x1100000
X2P = 0x1400000
HH = 0x1700000
STAMP = 0x1E00000
WS_SIZE = 0x2000000
OOB = 0x40000000
EV_XH, EV_WQ, EV_WD, EV_O, EV_X2, EV_HA, EV_HB = range(7)

RING_G = 17
LDS_H = 0x22000
LDS_T = 0x27000
T_GA = LDS_T
T_GB = LDS_T + 1024
T_UV = LDS_T + 2048
LDS_A, LDS_B, LDS_C, LDS_D, LDS_D2 = 0x0, 0x6000, 0x9000, 0xC000, 0x11000
T_S, T_16B, T_32B, T_SB = 0x14000, 0x14200, 0x14400, 0x14800
LDS_BYTES = 0x28000

S_X, S_WS, S_OUT, S_MOD, S_C, S_WQ, S_D1, S_D2, S_WSA, S_WSB, S_WSD = 28, 32, 36, 40, 44, 48, 52, 56, 4, 8, 12
sW, sI, sJ, sL, sN, sW2K, sDma, sCnt = 60, 61, 62, 63, 64, 65, 66, 67
sBQ, sBO, sBG, sBD, sMT2, sMT1, sCS = 68, 69, 70, 71, 72, 73, 74
T = list(range(75, 88))
sStamp = 88

vLane, vL16, vL16b, vL16c, vG, vM, vDma = 1, 2, 3, 4, 5, 6, 7
vDmaV = [8, 9, 10]
vFlag = 11
vXr = 12
vNonce, vPoll = 22, 23
vT = 24
vWB = 64
vAcc = 128


def srd(b):
    return f"s[{b}:{b+3}]"


def q(b, n=4, k="v"):
    return f"{k}[{b}:{b+n-1}]"


class Gen:
    def __init__(self, stop=99, stamps=False, mapping="4x2", dist=4):
        self.a = Asm()
        self.stop, self.stamps, self.mapping, self.dist = stop, stamps, mapping, dist
        self.nstamp = 0
        self.ds = []
        self.groups = []
        self.g_issue = 0
        self.g_half = False
        self.g_synced = 0
        self.g_limit = 0
        self.f_consumed = 0
        self.f_free = 0

    def stamp(self):
        if not self.stamps:
            return
        a = self.a
        a("s_waitcnt lgkmcnt(0)")
        self.ds = []
        a(f"s_memrealtime s[{T[11-1]+1}:{T[11-1]+2}]")
        a("s_waitcnt lgkmcnt(0)")
        a(f"v_writelane_b32 v255, s{T[11-1]+1}, {self.nstamp}")
        self.nstamp += 1

    def dsop(self, s, tag=None):
        if len(self.ds) >= 15:
            self.a("s_waitcnt lgkmcnt(14)")
            del self.ds[:len(self.ds) - 14]
        self.a(s)
        self.ds.append(tag)

    def wait_ds(self, tags=None):
        if tags is None:
            self.a("s_waitcnt lgkmcnt(0)")
            self.ds = []
            return
        idx = max((i for i, t in enumerate(self.ds) if t in tags), default=-1)
        if idx >= 0:
            n = len(self.ds) - 1 - idx
            self.a(f"s_waitcnt lgkmcnt({min(n, 15)})")
            if n <= 15:
                del self.ds[:idx + 1]
            else:
                del self.ds[:len(self.ds) - 15]

    def mksrd(self, d, p, size):
        a = self.a
        a(f"s_mov_b32 s{d}, s{p}")
        a(f"s_mov_b32 s{d+1}, s{p+1}")
        a(f"s_mov_b32 s{d+2}, {size}")
        a(f"s_mov_b32 s{d+3}, 0x20000")

    def divmod_s(self, dq, dr, src, n):
        a = self.a
        mul = (1 << 16) // n + 1
        assert all((x * mul) >> 16 == x // n for x in range(1024))
        a(f"s_mul_i32 s{dq}, s{src}, {mul}")
        a(f"s_lshr_b32 s{dq}, s{dq}, 16")
        a(f"s_mul_i32 s{dr}, s{dq}, {n}")
        a(f"s_sub_u32 s{dr}, s{src}, s{dr}")

    def divmod_v(self, dq, dr, src, n):
        a = self.a
        mul = (1 << 16) // n + 1
        assert all((x * mul) >> 16 == x // n for x in range(1024))
        a(f"v_mul_u32_u24 v{dq}, {mul}, v{src}")
        a(f"v_lshrrev_b32 v{dq}, 16, v{dq}")
        a(f"v_mul_u32_u24 v{dr}, {n}, v{dq}")
        a(f"v_sub_u32 v{dr}, v{src}, v{dr}")

    def barrier(self):
        self.a("s_barrier")
        self.f_free = self.f_consumed

    def publish(self, ev, tags):
        a = self.a
        a.wait_vm(tags)
        self.barrier()
        a(f"s_mov_b32 s{T[0]}, {FLAG + ev*0x8000}")
        a.vmem(f"buffer_store_dword v{vNonce}, v{vFlag}, {srd(S_WS)}, s{T[0]} offen sc1", "flag")

    def poll(self, ev, n=1, wave=3):
        a = self.a
        lp, sk = a.label("poll"), a.label("ready")
        a(f"s_cmp_lg_u32 s{sW}, {wave}")
        a(f"s_cbranch_scc1 {sk}")
        a(f"s_mov_b32 s{sCnt}, 0")
        a(f"{lp}:")
        for k in range(n):
            a(f"s_mov_b32 s{T[0]}, {FLAG + ev*0x8000 + k*0x2000}")
            a(f"buffer_load_dword v{vT+k}, v{vPoll}, {srd(S_WS)}, s{T[0]} offen sc1")
        a("s_waitcnt vmcnt(0)")
        for k in range(n):
            a(f"v_xor_b32 v{vT+k}, s{sN}, v{vT+k}")
        for k in range(1, n):
            a(f"v_or_b32 v{vT}, v{vT}, v{vT+k}")
        a(f"v_cmp_ne_u32 vcc, 0, v{vT}")
        a(f"s_cbranch_vccz {sk}")
        a(f"s_add_u32 s{sCnt}, s{sCnt}, 1")
        a(f"s_cmp_lt_u32 s{sCnt}, 20000")
        a(f"s_cbranch_scc1 {lp}")
        a(f"{sk}:")
        self.barrier()

    def gather_mod(self, addrs, base, outs):
        a = self.a
        lp, sk = a.label("gat"), a.label("gdone")
        a(f"s_mov_b32 s{sCnt}, 0")
        a(f"s_mov_b32 s{T[0]}, {MODP}")
        a(f"s_mov_b32 s{T[1]}, {MODP + 2560}")
        a(f"{lp}:")
        for i, ad in enumerate(addrs):
            for k in range(10):
                r = base + 20 * i + 2 * k
                a(f"buffer_load_dwordx2 {q(r,2)}, v{ad}, {srd(S_WS)}, s{T[k//5]} offen offset:{(k%5)*512} sc1")
        a.wait_vm_all()
        tags = [base + 20 * i + 2 * k + 1 for i in range(len(addrs)) for k in range(10)]
        for r in tags:
            a(f"v_xor_b32 v{r}, s{sN}, v{r}")
        for k in range(1, len(tags) - 1, 2):
            a(f"v_or3_b32 v{tags[0]}, v{tags[0]}, v{tags[k]}, v{tags[k+1]}")
        a(f"v_or_b32 v{tags[0]}, v{tags[0]}, v{tags[-1]}")
        a(f"v_cmp_ne_u32 vcc, 0, v{tags[0]}")
        a(f"s_cbranch_vccz {sk}")
        a(f"s_add_u32 s{sCnt}, s{sCnt}, 1")
        a(f"s_cmp_lt_u32 s{sCnt}, 20000")
        a(f"s_cbranch_scc1 {lp}")
        a(f"{sk}:")
        for i, o in enumerate(outs):
            b = base + 20 * i
            for k in range(5):
                a(f"v_add_f32 v{b+4*k}, v{b+4*k}, v{b+4*k+2}")
            a(f"v_add_f32 v{b}, v{b}, v{b+4}")
            a(f"v_add_f32 v{b+8}, v{b+8}, v{b+12}")
            a(f"v_add_f32 v{b}, v{b}, v{b+16}")
            a(f"v_add_f32 v{o}, v{b}, v{b+8}")

    def scale_frag(self, dst, src, sc, tmp):
        a = self.a
        for d in range(4):
            a(f"v_lshlrev_b32 v{tmp+2*d}, 16, v{src+d}")
            a(f"v_and_b32 v{tmp+2*d+1}, 0xffff0000, v{src+d}")
        for d in range(4):
            a(f"v_pk_mul_f32 {q(tmp+2*d,2)}, {q(tmp+2*d,2)}, {q(sc+2*d,2)}")
        for d in range(4):
            a(f"v_cvt_pk_bf16_f32 v{dst+d}, v{tmp+2*d}, v{tmp+2*d+1}")

    def add_groups(self, sbase, n, voff):
        for k in range(n):
            self.groups.append((sbase, k * 8192) + voff(k))

    def can_issue(self):
        g = self.g_issue
        if self.g_half:
            return True
        return g < min(self.g_limit, len(self.groups)) and (g - RING_G + 1) * 8 <= self.f_free

    def issue_half(self):
        a = self.a
        g = self.g_issue
        sbase, off, va, vb = self.groups[g]
        if not self.g_half:
            a(f"s_add_u32 m0, s{sW2K}, {(g % RING_G) * 8192}")
            a(f"s_add_u32 s{sDma}, s{sbase}, {off}")
            a.vmem(f"buffer_load_dwordx4 v{va}, {srd(S_WS)}, s{sDma} offen sc1 lds", ("w", g))
            self.g_half = True
        else:
            a.vmem(f"buffer_load_dwordx4 v{vb}, {srd(S_WS)}, s{sDma} offen offset:1024 sc1 lds", ("w", g))
            self.g_half = False
            self.g_issue += 1

    def issue_groups(self, n=999):
        while n > 0 and self.can_issue():
            self.issue_half()
            if not self.g_half:
                n -= 1

    def sync_groups(self, upto):
        while self.g_issue < upto:
            assert self.can_issue(), (self.g_issue, upto, self.f_free)
            self.issue_half()
        self.a.wait_vm(lambda t: isinstance(t, tuple) and t[0] == "w" and t[1] < upto)
        self.barrier()
        self.g_synced = max(self.g_synced, upto)

    @staticmethod
    def ring_addr(f, bases=(vL16, vL16b, vL16c), tile0=False):
        off = ((f // 8) % RING_G) * 8192 + (0 if tile0 else (f % 8) * 1024)
        return bases[off >> 16], off & 0xFFFF

    def gemm(self, reads, ops, f_end, fillers, every=4, sync_every=2, nb=None):
        a, dist = self.a, self.dist
        nb = nb or dist + 4
        last = {}
        for k, (ids, _, _) in enumerate(ops):
            for i in ids:
                last[i] = k
        g_end = (f_end + 7) // 8
        nr = 0
        next_bar = None
        for k, (ids, tpl, tag) in enumerate(ops):
            want = min(max(ids) + dist, len(reads) - 1)
            while nr <= want and (nr < nb or last.get(nr - nb, -1) < k):
                reg, off, f = reads[nr]
                if f is not None:
                    g = f // 8
                    if next_bar is None:
                        next_bar = g
                    if g >= self.g_synced or g >= next_bar:
                        self.sync_groups(max(min(g + sync_every, g_end), min(self.g_synced, g_end)))
                        next_bar = g + sync_every
                self.dsop(f"ds_read_b128 {q(vWB + 4*(nr % nb))}, v{reg} offset:{off}", ("r", nr))
                nr += 1
            assert nr > max(ids)
            if tag is not None:
                while fillers and tag not in a.vm and any(getattr(f, "tag", None) == tag for f in fillers):
                    fillers.pop(0)()
                a.wait_vm(tag)
            self.wait_ds({("r", i) for i in ids})
            a(tpl.format(*[q(vWB + 4 * (i % nb)) for i in ids]))
            done = [reads[i][2] for i in range(nr) if reads[i][2] is not None and last[i] > k]
            self.f_consumed = max(self.f_consumed, min(done) if done else (reads[nr][2] if nr < len(reads) and reads[nr][2] is not None else self.f_consumed))
            if k % every == every - 1:
                if self.g_half:
                    self.issue_half()
                elif fillers:
                    fillers.pop(0)()
                elif self.can_issue():
                    self.issue_half()
        while fillers:
            fillers.pop(0)()
        if self.g_half:
            self.issue_half()
        self.f_consumed = g_end * 8

    def aload(self, areg, sbase, off, tag):
        def f():
            a = self.a
            if f.first:
                a(f"s_add_u32 s{T[2]}, s{sbase}, {off & ~0xFFF}")
            a.vmem(f"buffer_load_dwordx4 {q(areg,4,'a')}, v{vL16}, {srd(S_WS)}, s{T[2]} offen offset:{off & 0xFFF} sc1", tag)
        f.tag = tag
        f.first = True
        return f

    def prologue(self):
        a = self.a
        a("s_cmp_ge_u32 s2, 256")
        a("s_cbranch_scc1 L_end")
        a("s_load_dwordx16 s[4:19], s[0:1], 0")
        a("s_load_dwordx8 s[20:27], s[0:1], 64")
        if self.stamps:
            a(f"s_memrealtime s[{T[10]+1}:{T[10]+2}]")
        a(f"v_and_b32 v{vLane}, 63, v0")
        a(f"v_lshrrev_b32 v{vT}, 6, v0")
        a(f"v_lshlrev_b32 v{vL16}, 4, v{vLane}")
        a(f"v_readfirstlane_b32 s{sW}, v{vT}")
        a(f"v_add_u32 v{vL16b}, 0x10000, v{vL16}")
        a(f"v_add_u32 v{vL16c}, 0x20000, v{vL16}")
        a(f"v_lshrrev_b32 v{vG}, 4, v{vLane}")
        a(f"v_and_b32 v{vM}, 15, v{vLane}")
        a(f"s_and_b32 s{T[0]}, s2, 7")
        a(f"s_lshr_b32 s{T[1]}, s2, 3")
        if self.mapping == "4x2":
            a(f"s_lshr_b32 s{sI}, s{T[0]}, 1")
            a(f"s_lshl_b32 s{sI}, s{sI}, 2")
            a(f"s_lshr_b32 s{T[2]}, s{T[1]}, 3")
            a(f"s_add_u32 s{sI}, s{sI}, s{T[2]}")
            a(f"s_and_b32 s{sJ}, s{T[0]}, 1")
            a(f"s_lshl_b32 s{sJ}, s{sJ}, 3")
            a(f"s_and_b32 s{T[2]}, s{T[1]}, 7")
            a(f"s_add_u32 s{sJ}, s{sJ}, s{T[2]}")
        else:
            a(f"s_lshl_b32 s{sI}, s{T[0]}, 1")
            a(f"s_lshr_b32 s{T[2]}, s{T[1]}, 4")
            a(f"s_add_u32 s{sI}, s{sI}, s{T[2]}")
            a(f"s_and_b32 s{sJ}, s{T[1]}, 15")
        a(f"s_lshl_b32 s{sL}, s{sI}, 4")
        a(f"s_add_u32 s{sL}, s{sL}, s{sJ}")
        a(f"s_lshl_b32 s{sW2K}, s{sW}, 11")
        a(f"v_add_u32 v{vDma}, s{sW2K}, v{vL16}")
        a(f"s_and_b32 s{sCS}, s{sJ}, 7")
        a(f"s_mul_i32 s{sBQ}, s{sJ}, {160*1024}")
        a(f"s_add_u32 s{sBQ}, s{sBQ}, {WQ}")
        a(f"s_mul_i32 s{sBO}, s{sCS}, {104*1024}")
        a(f"s_add_u32 s{sBO}, s{sBO}, {WOP}")
        a(f"s_mul_i32 s{sBG}, s{sJ}, {280*1024}")
        a(f"s_add_u32 s{sBG}, s{sBG}, {WGU}")
        a(f"s_mul_i32 s{sBD}, s{sCS}, {272*1024}")
        a(f"s_add_u32 s{sBD}, s{sBD}, {WDP}")
        a(f"s_lshl_b32 s{sMT2}, s{sI}, 3")
        a(f"s_lshr_b32 s{T[2]}, s{sJ}, 3")
        a(f"s_lshl_b32 s{T[2]}, s{T[2]}, 2")
        a(f"s_add_u32 s{sMT1}, s{sMT2}, s{T[2]}")
        a(f"s_add_u32 s{sMT1}, s{sMT1}, s{sW}")
        a(f"s_lshl_b32 s{T[2]}, s{sW}, 1")
        a(f"s_add_u32 s{sMT2}, s{sMT2}, s{T[2]}")
        a(f"s_lshl_b32 s{T[2]}, s{sL}, 7")
        a(f"v_mov_b32 v{vT}, s{T[2]}")
        a(f"v_mov_b32 v{vFlag}, {OOB}")
        a("v_cmp_eq_u32 vcc, 0, v0")
        a(f"v_cndmask_b32 v{vFlag}, v{vFlag}, v{vT}, vcc")
        a("s_waitcnt lgkmcnt(0)")
        if self.stamps:
            a("v_mov_b32 v255, 0")
            a(f"v_writelane_b32 v255, s{T[10]+1}, 0")
            self.nstamp = 1
        a(f"s_load_dword s{sN}, s[26:27], 0")
        self.mksrd(S_MOD, 20, 640 * 3840 * 2)
        self.mksrd(S_C, 18, 1280)
        a(f"s_cmp_ge_u32 s{sL}, 56")
        a(f"s_cselect_b32 s{S_MOD+2}, s{S_MOD+2}, 0")
        self.mksrd(S_WQ, 6, 640 * 1920 * 2)
        self.mksrd(S_X, 4, 2048 * 1280)
        self.mksrd(S_WS, 26, WS_SIZE)
        self.mksrd(S_OUT, 22, 2048 * 1280)
        self.mksrd(S_D2, 16, 1728 * 1280)
        a(f"s_cmp_lt_u32 s{sL}, 108")
        a(f"s_cselect_b32 s{S_D1}, s12, s14")
        a(f"s_cselect_b32 s{S_D1+1}, s13, s15")
        a(f"s_cmp_lt_u32 s{sL}, 216")
        a(f"s_cselect_b32 s{S_D1}, s{S_D1}, s8")
        a(f"s_cselect_b32 s{S_D1+1}, s{S_D1+1}, s9")
        a(f"s_mov_b32 s{S_D1+2}, {640*1280}")
        a(f"s_cselect_b32 s{S_D1+2}, {640*3456}, s{S_D1+2}")
        a(f"s_mov_b32 s{S_D1+3}, 0x20000")
        for d, cmp_ in ((S_WSA, f"s_cmp_ge_u32 s{sL}, 56"), (S_WSB, f"s_cmp_lt_u32 s{sL}, 240"), (S_WSD, f"s_cmp_lt_u32 s{sL}, 180")):
            self.mksrd(d, 26, WS_SIZE)
            a(cmp_)
            a(f"s_cselect_b32 s{d+2}, s{d+2}, 0")

    def phase0(self):
        a = self.a
        sKA, sGA, sKB, sGB, sK4, sCB, sK18, sCD = 16, 17, 18, 19, 20, 21, 22, 23
        sPitch = 24
        vA, vB0, vC, vD, vX = 200, 201, 204, 205, 208
        vTr, vR, vCc = 220, 221, 222
        a(f"s_sub_u32 s{T[0]}, 255, s{sL}")
        a(f"s_min_u32 s{T[0]}, s{T[0]}, 199")
        self.divmod_s(sGA, sKA, T[0], 10)
        a(f"s_min_u32 s{T[0]}, s{sL}, 239")
        self.divmod_s(sGB, sKB, T[0], 10)
        a(f"s_min_u32 s{T[0]}, s{sL}, 179")
        self.divmod_s(sCD, sK18, T[0], 18)
        self.divmod_s(T[1], T[0], sL, 108)
        a(f"s_mov_b32 s25, s{T[1]}")
        a(f"s_and_b32 s{sK4}, s{T[0]}, 3")
        a(f"s_lshr_b32 s{sCB}, s{T[0]}, 2")
        a(f"s_cmp_lt_u32 s{sL}, 216")
        a(f"s_mov_b32 s{sPitch}, 1280")
        a(f"s_cselect_b32 s{sPitch}, 3456, s{sPitch}")
        a(f"v_lshlrev_b32 v{vT}, 1, v{vLane}")
        a(f"s_lshl_b32 s{T[0]}, s{sKA}, 7")
        a.vmem(f"buffer_load_ushort v{vT+1}, v{vT}, {srd(S_C)}, s{T[0]} offen", "c")
        a(f"v_lshrrev_b32 v{vT+2}, 3, v{vLane}")
        a(f"v_and_b32 v{vT+3}, 7, v{vLane}")
        a(f"v_lshlrev_b32 v{vT+3}, 4, v{vT+3}")
        a(f"s_lshl_b32 s{T[0]}, s{sW}, 4")
        a(f"v_add_u32 v{vT+4}, s{T[0]}, v{vT+2}")
        a(f"v_mul_u32_u24 v{vA}, 7680, v{vT+4}")
        a(f"v_add_u32 v{vA}, v{vA}, v{vT+3}")
        a(f"s_mul_i32 s{T[3]}, s{sKA}, {64*7680}")
        a(f"s_lshl_b32 s{T[0]}, s{sGA}, 7")
        a(f"s_add_u32 s{T[3]}, s{T[3]}, s{T[0]}")

        def dma_a(qq):
            for t in range(2):
                a(f"s_add_u32 m0, s{sW2K}, {LDS_A + qq*8192 + t*1024}")
                a(f"s_add_u32 s{T[0]}, s{T[3]}, {qq*2560 + t*61440}")
                a.vmem(f"buffer_load_dwordx4 v{vA}, {srd(S_MOD)}, s{T[0]} offen lds", ("A", qq))
        dma_a(0)
        a(f"s_lshr_b32 s{T[4]}, s{sGB}, 3")
        a(f"s_and_b32 s{T[5]}, s{sGB}, 7")
        a(f"s_mul_i32 s{T[0]}, s{sKB}, {64*3840}")
        a(f"s_mul_i32 s{T[1]}, s{T[4]}, 1280")
        a(f"s_add_u32 s{T[0]}, s{T[0]}, s{T[1]}")
        a(f"s_mul_i32 s{T[1]}, s{T[5]}, 160")
        a(f"s_add_u32 s{T[0]}, s{T[0]}, s{T[1]}")
        a(f"s_lshl_b32 s{T[6]}, s{sW}, 10")
        for t in range(3):
            a(f"v_add_u32 v{vT+4}, {256*t}, v0")
            self.divmod_v(vT + 5, vT + 6, vT + 4, 10)
            a(f"v_mul_u32_u24 v{vB0}, 3840, v{vT+5}")
            a(f"v_lshl_add_u32 v{vB0}, v{vT+6}, 4, v{vB0}")
            if t == 2:
                a(f"v_mov_b32 v{vT+6}, {OOB}")
                a(f"v_cmp_gt_u32 vcc, 64, v{vT+5}")
                a(f"v_cndmask_b32 v{vB0}, v{vT+6}, v{vB0}, vcc")
            a(f"s_add_u32 m0, s{T[6]}, {LDS_B + t*4096}")
            a("s_nop 0")
            a.vmem(f"buffer_load_dwordx4 v{vB0}, {srd(S_WQ)}, s{T[0]} offen lds", "B")
        a(f"v_lshrrev_b32 v{vT+4}, 5, v0")
        a(f"v_and_b32 v{vT+5}, 31, v0")
        a(f"v_mul_u32_u24 v{vC}, 1280, v{vT+4}")
        a(f"v_lshl_add_u32 v{vC}, v{vT+5}, 4, v{vC}")
        a(f"s_mul_i32 s{T[0]}, s{sL}, {8*1280}")
        a.vmem(f"buffer_load_dwordx4 {q(vX)}, v{vC}, {srd(S_X)}, s{T[0]} offen", "C")
        a.vmem(f"buffer_load_dwordx4 {q(vX+4)}, v{vC}, {srd(S_X)}, s{T[0]} offen offset:512", "C")
        a(f"v_mov_b32 v{vT+6}, {OOB}")
        a(f"v_cmp_gt_u32 vcc, 16, v{vT+5}")
        a(f"v_cndmask_b32 v{vT+6}, v{vT+6}, v{vC}, vcc")
        a.vmem(f"buffer_load_dwordx4 {q(vX+8)}, v{vT+6}, {srd(S_X)}, s{T[0]} offen offset:1024", "C")
        a(f"s_getpc_b64 s[{T[7]+1}:{T[7]+2}]" if (T[7] + 1) % 2 == 0 else f"s_getpc_b64 s[{T[7]}:{T[7]+1}]")
        pc = T[7] + 1 if (T[7] + 1) % 2 == 0 else T[7]
        a(f"s_lshr_b32 s{T[0]}, s2, 3")
        a(f"s_and_b32 s{T[0]}, s{T[0]}, 3")
        a(f"s_lshl_b32 s{T[0]}, s{T[0]}, 13")
        a(f"v_lshlrev_b32 v{vT+6}, 5, v0")
        a(f"v_add_u32 v{vT+6}, s{T[0]}, v{vT+6}")
        a.vmem(f"global_load_dword v254, v{vT+6}, s[{pc}:{pc+1}]", "code")
        dma_a(1)
        dma_a(2)
        a(f"s_lshl_b32 s{T[0]}, s{sW}, 3")
        a(f"v_add_u32 v{vT+4}, s{T[0]}, v{vT+2}")
        a(f"v_mul_lo_u32 v{vD}, v{vT+4}, s{sPitch}")
        a(f"v_add_u32 v{vD}, v{vD}, v{vT+3}")
        a(f"s_mul_i32 s{T[0]}, s{sK4}, 160")
        a(f"s_mul_i32 s{T[0]}, s{T[0]}, s{sPitch}")
        a(f"s_lshl_b32 s{T[1]}, s{sCB}, 7")
        a(f"s_add_u32 s{T[0]}, s{T[0]}, s{T[1]}")
        a(f"s_lshl_b32 s{T[1]}, s{sPitch}, 5")
        for t in range(5):
            a(f"s_add_u32 m0, s{T[6]}, {LDS_D + t*4096}")
            a("s_nop 0")
            a.vmem(f"buffer_load_dwordx4 v{vD}, {srd(S_D1)}, s{T[0]} offen lds", "D1")
            if t < 4:
                a(f"s_add_u32 s{T[0]}, s{T[0]}, s{T[1]}")
        a(f"v_mul_u32_u24 v{vD}, 1280, v{vT+4}")
        a(f"v_add_u32 v{vD}, v{vD}, v{vT+3}")
        a(f"s_mul_i32 s{T[0]}, s{sK18}, {96*1280}")
        a(f"s_lshl_b32 s{T[1]}, s{sCD}, 7")
        a(f"s_add_u32 s{T[0]}, s{T[0]}, s{T[1]}")
        for t in range(3):
            a(f"s_add_u32 m0, s{T[6]}, {LDS_D2 + t*4096}")
            a(f"s_add_u32 s{T[1]}, s{T[0]}, {t*32*1280}")
            a.vmem(f"buffer_load_dwordx4 v{vD}, {srd(S_D2)}, s{T[1]} offen lds", "D2")
        a(f"v_mul_u32_u24 v{vT+4}, 1280, v{vM}")
        a(f"v_lshl_add_u32 v{vT+5}, v{vG}, 4, v{vT+4}")
        a(f"v_and_b32 v{vT+6}, 1, v{vG}")
        a(f"v_lshl_add_u32 v{vT+4}, v{vT+6}, 4, v{vT+4}")
        a(f"v_lshrrev_b32 v{vT+6}, 1, v{vG}")
        a(f"v_lshl_add_u32 v{vT+4}, v{vT+6}, 3, v{vT+4}")
        a(f"s_mul_i32 s{T[0]}, s{sMT1}, {16*1280}")
        a(f"s_mul_i32 s{T[1]}, s{sCS}, 160")
        a(f"s_add_u32 s{T[0]}, s{T[0]}, s{T[1]}")
        a.vmem(f"buffer_load_dwordx4 {q(vXr)}, v{vT+5}, {srd(S_X)}, s{T[0]} offen", "xr")
        a.vmem(f"buffer_load_dwordx4 {q(vXr+4)}, v{vT+5}, {srd(S_X)}, s{T[0]} offen offset:64", "xr")
        a.vmem(f"buffer_load_dwordx2 {q(vXr+8,2)}, v{vT+4}, {srd(S_X)}, s{T[0]} offen offset:128", "xr")
        a(f"v_bfe_u32 v{vR}, v{vLane}, 2, 2")
        a(f"v_and_b32 v{vCc}, 3, v{vLane}")
        a(f"v_lshl_add_u32 v{vTr}, v{vG}, 3, v{vR}")

        a.wait_vm("c")
        a(f"v_lshlrev_b32 v{vT+1}, 16, v{vT+1}")
        a(f"v_mul_f32 v{vT+2}, 0xbfb8aa3b, v{vT+1}")
        a(f"v_exp_f32 v{vT+2}, v{vT+2}")
        a(f"v_add_f32 v{vT+2}, 1.0, v{vT+2}")
        a(f"v_rcp_f32 v{vT+2}, v{vT+2}")
        a(f"v_mul_f32 v{vT+1}, v{vT+1}, v{vT+2}")
        a(f"v_cvt_pk_bf16_f32 v{vT+1}, v{vT+1}, v{vT+1}")
        a(f"v_lshlrev_b32 v{vT+2}, 1, v0")
        a(f"v_add_u32 v{vT+2}, {T_S}, v{vT+2}")
        a(f"ds_write_b16 v{vT+2}, v{vT+1}")
        a(f"s_lshl_b32 s{T[0]}, s{sW}, 7")
        a(f"s_add_u32 s{T[0]}, s{T[0]}, {T_S}")
        a(f"v_lshlrev_b32 v{vT+2}, 4, v{vG}")
        a(f"v_add_u32 v{vT+2}, s{T[0]}, v{vT+2}")
        vS = 224
        a("s_waitcnt lgkmcnt(0)")
        a(f"ds_read_b128 {q(vS)}, v{vT+2}")
        a(f"ds_read_b128 {q(vS+4)}, v{vT+2} offset:64")
        a(f"s_add_u32 s{sN}, s{sN}, 0x9e3779b1")
        a(f"v_mov_b32 v{vNonce}, s{sN}")
        vTrA, vStA = 232, 233
        a(f"v_lshlrev_b32 v{vTrA}, 7, v{vTr}")
        a(f"v_lshl_add_u32 v{vTrA}, v{vCc}, 3, v{vTrA}")
        a(f"s_lshl_b32 s{T[0]}, s{sW}, 5")
        a(f"v_add_u32 v{vTrA}, s{T[0]}, v{vTrA}")
        a(f"v_lshlrev_b32 v{vStA}, 5, v{vG}")
        a(f"v_lshl_add_u32 v{vStA}, v{vM}, 4, v{vStA}")
        a(f"s_lshl_b32 s{T[0]}, s{sW}, 7")
        a(f"v_add_u32 v{vStA}, s{T[0]}, v{vStA}")
        a(f"v_mov_b32 v{vT+3}, {OOB}")
        a(f"v_cmp_gt_u32 vcc, 2, v{vM}")
        a(f"v_cndmask_b32 v{vStA}, v{vT+3}, v{vStA}, vcc")

        def task_a(qq):
            f, acc = vT + 8, vT + 16
            for st in range(2):
                for h in range(2):
                    a(f"ds_read_b64_tr_b16 {q(f+4*st+2*h,2)}, v{vTrA} offset:{LDS_A + qq*8192 + st*4096 + h*512}")
            a("s_waitcnt lgkmcnt(0)")
            a(f"v_mfma_f32_16x16x32_bf16 {q(acc)}, {q(f)}, {q(vS)}, 0")
            a(f"v_mfma_f32_16x16x32_bf16 {q(acc)}, {q(f+4)}, {q(vS+4)}, {q(acc)}")
            a(f"s_mul_i32 s{T[0]}, s{sGA}, 5120")
            a(f"s_lshl_b32 s{T[1]}, s{sKA}, 9")
            a(f"s_add_u32 s{T[0]}, s{T[0]}, s{T[1]}")
            a(f"s_add_u32 s{T[0]}, s{T[0]}, {MODP + qq*20*5120}")
            a(f"v_cmp_eq_u32 vcc, 0, v{vM}")
            o = vT + 20 + 4 * qq
            a(f"v_mov_b32 v{o+1}, s{sN}")
            a(f"v_mov_b32 v{o+3}, s{sN}")
            a(f"v_cndmask_b32 v{o}, v{acc+2}, v{acc}, vcc")
            a(f"v_cndmask_b32 v{o+2}, v{acc+3}, v{acc+1}, vcc")
            a.vmem(f"buffer_store_dwordx4 {q(o)}, v{vStA}, {srd(S_WSA)}, s{T[0]} offen sc1", "stA")
        a.wait_vm(("A", 0))
        a("s_waitcnt lgkmcnt(0)")
        a("s_barrier")
        task_a(0)
        self.stamp()

        a.wait_vm("C")
        s1, s2, one = vT, vT + 1, vT + 2
        a(f"v_mov_b32 v{one}, 0x3f803f80")
        a(f"v_mov_b32 v{s1}, 0")
        a(f"v_mov_b32 v{s2}, 0")
        u = 128
        for d in range(12):
            a(f"v_lshlrev_b32 v{u+2*d}, 16, v{vX+d}")
            a(f"v_and_b32 v{u+2*d+1}, 0xffff0000, v{vX+d}")
        for d in range(24):
            a(f"v_add_f32 v{s1}, v{s1}, v{u+d}")
            a(f"v_fmac_f32 v{s2}, v{u+d}, v{u+d}")
        for sh in (8, 4, 2, 1):
            a(f"v_add_f32_dpp v{s1}, v{s1}, v{s1} row_ror:{sh} row_mask:0xf bank_mask:0xf")
            a(f"v_add_f32_dpp v{s2}, v{s2}, v{s2} row_ror:{sh} row_mask:0xf bank_mask:0xf")
        a(f"v_mov_b32 v{vT+3}, v{s1}")
        a(f"v_mov_b32 v{vT+4}, v{s2}")
        a(f"v_permlane16_swap_b32 v{s1}, v{vT+3}")
        a(f"v_permlane16_swap_b32 v{s2}, v{vT+4}")
        a(f"v_add_f32 v{s1}, v{s1}, v{vT+3}")
        a(f"v_add_f32 v{s2}, v{s2}, v{vT+4}")
        self.ln_finish(s1, s2, vT + 3)
        for d in range(24):
            a(f"v_fma_f32 v{u+d}, v{u+d}, v{s2}, v{s1}")
        for d in range(12):
            a(f"v_cvt_pk_bf16_f32 v{vX+d}, v{u+2*d}, v{u+2*d+1}")
        a(f"v_and_b32 v{vT+5}, 31, v0")
        a(f"v_lshrrev_b32 v{vT+4}, 5, v0")
        a(f"v_mul_u32_u24 v{vT+6}, 144, v{vT+5}")
        a(f"v_lshl_add_u32 v{vT+6}, v{vT+4}, 4, v{vT+6}")
        a(f"ds_write_b128 v{vT+6}, {q(vX)} offset:{LDS_C}")
        a(f"ds_write_b128 v{vT+6}, {q(vX+4)} offset:{LDS_C + 32*144}")
        a(f"v_cmp_gt_u32 vcc, 16, v{vT+5}")
        a(f"s_and_saveexec_b64 s[{pc}:{pc+1}], vcc")
        a(f"ds_write_b128 v{vT+6}, {q(vX+8)} offset:{LDS_C + 64*144}")
        a(f"s_mov_b64 exec, -1")
        a(f"v_lshrrev_b32 v{vT+4}, 3, v0")
        a(f"v_and_b32 v{vT+5}, 7, v0")
        a(f"v_mul_u32_u24 v{vT+6}, 144, v{vT+4}")
        a(f"v_lshl_add_u32 v{vT+6}, v{vT+5}, 4, v{vT+6}")
        a(f"v_lshlrev_b32 v{vT+7}, 8, v{vT+4}")
        a(f"v_lshl_add_u32 v{vT+7}, v{vT+5}, 4, v{vT+7}")
        a(f"v_mov_b32 v{vT+8}, {OOB}")
        a(f"v_cmp_gt_u32 vcc, 16, v{vT+4}")
        a(f"v_cndmask_b32 v{vT+8}, v{vT+8}, v{vT+7}, vcc")
        a(f"s_lshr_b32 s{T[0]}, s{sL}, 1")
        a(f"s_mul_i32 s{T[0]}, s{T[0]}, 20480")
        a(f"s_and_b32 s{T[1]}, s{sL}, 1")
        a(f"s_lshl_b32 s{T[1]}, s{T[1]}, 7")
        a(f"s_add_u32 s{T[0]}, s{T[0]}, s{T[1]}")
        a.wait_vm("B")
        a("s_waitcnt lgkmcnt(0)")
        a("s_barrier")
        for t in range(3):
            a(f"ds_read_b128 {q(vX+4*t)}, v{vT+6} offset:{LDS_C + 32*144*t}")
        a("s_waitcnt lgkmcnt(0)")
        for t in range(3):
            a(f"s_add_u32 s{T[1]}, s{T[0]}, {XH + t*8192}")
            a.vmem(f"buffer_store_dwordx4 {q(vX+4*t)}, v{vT+7 if t < 2 else vT+8}, {srd(S_WS)}, s{T[1]} offen sc1", "stC")
        self.stamp()

        a(f"s_and_b32 s{T[2]}, s{sW}, 1")
        a(f"s_mul_i32 s{T[2]}, s{T[2]}, 10")
        a(f"s_add_u32 s{T[2]}, s{T[2]}, s{sKB}")
        a(f"s_mul_i32 s{T[2]}, s{T[2]}, 5120")
        a(f"v_lshlrev_b32 v{vT}, 3, v{vLane}")
        a(f"v_add_u32 v{vT}, s{T[2]}, v{vT}")
        fm, fl = 128, 136
        a(f"v_mul_u32_u24 v{vT+2}, 160, v{vTr}")
        a(f"s_mul_i32 s{T[0]}, s{sW}, 40")
        a(f"v_lshl_add_u32 v{vT+3}, v{vCc}, 3, v{vT+2}")
        a(f"v_add_u32 v{vT+3}, s{T[0]}, v{vT+3}")
        a(f"v_mad_u32_u24 v{vT+4}, v{vCc}, 40, v{vT+2}")
        for st in range(2):
            for h in range(2):
                a(f"ds_read_b64_tr_b16 {q(fm+4*st+2*h,2)}, v{vT+3} offset:{LDS_B + (32*st+4*h)*160}")
                a(f"ds_read_b64_tr_b16 {q(fl+4*st+2*h,2)}, v{vT+4} offset:{LDS_B + (32*st+4*h)*160 + 32}")
        self.gather_mod([vT], 160, [vT + 1])
        a("s_barrier")
        a(f"s_mov_b32 s{T[0]}, {FLAG + EV_XH*0x8000}")
        a.vmem(f"buffer_store_dword v{vNonce}, v{vFlag}, {srd(S_WS)}, s{T[0]} offen sc1", "flag")
        self.stamp()
        a(f"v_cvt_pk_bf16_f32 v{vT+1}, v{vT+1}, v{vT+1}")
        a(f"v_lshlrev_b32 v{vT+2}, 1, v0")
        a(f"v_add_u32 v{vT+2}, {T_16B}, v{vT+2}")
        a(f"ds_write_b16 v{vT+2}, v{vT+1}")
        a(f"v_and_b32 v{vT+1}, 0xffff0000, v{vT+1}")
        a(f"v_add_f32 v{vT+1}, 1.0, v{vT+1}")
        a(f"v_cvt_pk_bf16_f32 v{vT+1}, v{vT+1}, v{vT+1}")
        a(f"v_and_b32 v{vT+1}, 0xffff0000, v{vT+1}")
        a(f"v_lshlrev_b32 v{vT+2}, 2, v0")
        a(f"v_add_u32 v{vT+2}, {T_32B}, v{vT+2}")
        a(f"ds_write_b32 v{vT+2}, v{vT+1}")
        a(f"v_lshlrev_b32 v{vT+2}, 4, v{vG}")
        a(f"v_add_u32 v{vT+2}, {T_16B}, v{vT+2}")
        a(f"v_lshlrev_b32 v{vT+3}, 5, v{vG}")
        a(f"v_add_u32 v{vT+3}, {T_32B + 256}, v{vT+3}")
        a("s_waitcnt lgkmcnt(0)")
        a("s_barrier")
        sa, sc = 144, 152
        for st in range(2):
            a(f"ds_read_b128 {q(sa+4*st)}, v{vT+2} offset:{64*st}")
            a(f"ds_read_b128 {q(sc+8*st)}, v{vT+3} offset:{128*st}")
            a(f"ds_read_b128 {q(sc+8*st+4)}, v{vT+3} offset:{128*st+16}")
        a(f"s_lshr_b32 s{T[4]}, s{sGB}, 3")
        a(f"s_and_b32 s{T[5]}, s{sGB}, 7")
        a(f"s_lshl_b32 s{T[5]}, s{T[5]}, 1")
        a(f"s_lshl_b32 s{T[0]}, s{T[4]}, 2")
        a(f"s_lshr_b32 s{T[0]}, 0x402, s{T[0]}")
        a(f"s_and_b32 s{T[0]}, s{T[0]}, 15")
        a(f"s_and_b32 s{T[1]}, s{sW}, 1")
        a(f"s_add_u32 s{T[0]}, s{T[0]}, s{T[1]}")
        a(f"s_lshr_b32 s{T[1]}, s{sW}, 1")
        a(f"s_add_u32 s{T[1]}, s{T[1]}, s{T[5]}")
        a(f"s_cmp_eq_u32 s{T[4]}, 2")
        a(f"s_cselect_b32 s{T[2]}, 7, 6")
        a(f"s_cmp_eq_u32 s{T[4]}, 0")
        a(f"s_cselect_b32 s{T[3]}, 8, 0")
        a(f"s_mul_i32 s{T[6]}, s{T[1]}, {160*1024}")
        a(f"s_lshl_b32 s{T[7]}, s{T[0]}, 10")
        a(f"s_add_u32 s{T[6]}, s{T[6]}, s{T[7]}")
        a(f"s_lshl_b32 s{T[8]}, s{sKB}, 14")
        a(f"s_add_u32 s{T[8]}, s{T[8]}, {WQ}")
        a(f"s_add_u32 s{T[6]}, s{T[6]}, s{T[8]}")
        a(f"s_mul_i32 s{T[7]}, s{T[5]}, {160*1024}")
        a(f"s_add_u32 s{T[8]}, s{T[8]}, s{T[7]}")
        a(f"s_lshl_b32 s{T[7]}, s{T[2]}, 10")
        a(f"s_add_u32 s{T[8]}, s{T[8]}, s{T[7]}")
        a(f"s_lshl_b32 s{T[7]}, s{T[3]}, 4")
        a(f"s_add_u32 s{T[8]}, s{T[8]}, s{T[7]}")
        a(f"v_lshrrev_b32 v{vT+4}, 3, v{vM}")
        a(f"v_mul_u32_u24 v{vT+4}, {160*1024 - 128}, v{vT+4}")
        a(f"v_add_u32 v{vT+4}, v{vT+4}, v{vL16}")
        a(f"v_mov_b32 v{vT+5}, {OOB}")
        a(f"v_cmp_gt_u32 vcc, 64, v0")
        a(f"v_cndmask_b32 v{vT+4}, v{vT+5}, v{vT+4}, vcc")
        a(f"s_mul_i32 s{T[1]}, s{T[1]}, 5120")
        a(f"s_lshl_b32 s{T[0]}, s{T[0]}, 6")
        a(f"s_add_u32 s{T[1]}, s{T[1]}, s{T[0]}")
        a(f"s_lshl_b32 s{T[0]}, s{sKB}, 9")
        a(f"s_add_u32 s{T[0]}, s{T[0]}, {V1P}")
        a(f"s_add_u32 s{T[1]}, s{T[1]}, s{T[0]}")
        a(f"s_mul_i32 s{T[5]}, s{T[5]}, 5120")
        a(f"s_add_u32 s{T[0]}, s{T[0]}, s{T[5]}")
        a(f"s_lshl_b32 s{T[2]}, s{T[2]}, 6")
        a(f"s_add_u32 s{T[0]}, s{T[0]}, s{T[2]}")
        a(f"s_lshl_b32 s{T[3]}, s{T[3]}, 2")
        a(f"s_add_u32 s{T[0]}, s{T[0]}, s{T[3]}")
        a(f"v_lshlrev_b32 v{vT+6}, 4, v{vG}")
        a(f"v_lshrrev_b32 v{vT+7}, 1, v{vG}")
        a(f"v_mul_u32_u24 v{vT+7}, {5120 - 32}, v{vT+7}")
        a(f"v_add_u32 v{vT+7}, v{vT+7}, v{vT+6}")
        a(f"v_cndmask_b32 v{vT+7}, v{vT+5}, v{vT+7}, vcc")
        a(f"v_cmp_eq_u32 vcc, 0, v{vM}")
        a(f"v_cndmask_b32 v{vT+6}, v{vT+5}, v{vT+6}, vcc")
        a(f"v_cndmask_b32 v{vT+7}, v{vT+5}, v{vT+7}, vcc")
        a("s_waitcnt lgkmcnt(0)")
        pm, pl, o = 168, 172, 176
        a(f"v_mfma_f32_16x16x32_bf16 {q(pm)}, {q(fm)}, {q(sa)}, 0")
        a(f"v_mfma_f32_16x16x32_bf16 {q(pl)}, {q(fl)}, {q(sa)}, 0")
        a(f"v_mfma_f32_16x16x32_bf16 {q(pm)}, {q(fm+4)}, {q(sa+4)}, {q(pm)}")
        a(f"v_mfma_f32_16x16x32_bf16 {q(pl)}, {q(fl+4)}, {q(sa+4)}, {q(pl)}")
        for st in range(2):
            self.scale_frag(o + 8 * st, fm + 4 * st, sc + 8 * st, vT + 8)
            a.vmem(f"buffer_store_dwordx4 {q(o+8*st)}, v{vL16}, {srd(S_WSB)}, s{T[6]} offen sc1", "stB")
            a(f"s_add_u32 s{T[6]}, s{T[6]}, 8192")
        for st in range(2):
            self.scale_frag(o + 8 * st + 4, fl + 4 * st, sc + 8 * st, vT + 8)
            a.vmem(f"buffer_store_dwordx4 {q(o+8*st+4)}, v{vT+4}, {srd(S_WSB)}, s{T[8]} offen sc1", "stB")
            a(f"s_add_u32 s{T[8]}, s{T[8]}, 8192")
        a.vmem(f"buffer_store_dwordx4 {q(pm)}, v{vT+6}, {srd(S_WSB)}, s{T[1]} offen sc1", "stB")
        a.vmem(f"buffer_store_dwordx4 {q(pl)}, v{vT+7}, {srd(S_WSB)}, s{T[0]} offen sc1", "stB")
        task_a(1)
        task_a(2)
        self.publish(EV_WQ, "stB")
        self.stamp()

        vPerm, vSt = 234, 235
        a(f"v_and_b32 v{vT}, 1, v{vCc}")
        a(f"v_lshrrev_b32 v{vT+1}, 1, v{vCc}")
        a(f"v_lshl_add_u32 v{vPerm}, v{vT}, 1, v{vT+1}")
        a(f"v_lshlrev_b32 v{vPerm}, 3, v{vPerm}")
        a(f"s_lshl_b32 s{T[0]}, s{sW}, 5")
        a(f"v_add_u32 v{vPerm}, s{T[0]}, v{vPerm}")
        vGa, vGb = 236, 237
        a(f"v_and_b32 v{vGa}, 1, v{vG}")
        a(f"v_lshrrev_b32 v{vGb}, 1, v{vG}")

        def out_tile_dest(scb, region, per, dbase, dhi):
            a(f"s_lshl_b32 s{T[0]}, s{scb}, 2")
            a(f"s_add_u32 s{T[0]}, s{T[0]}, s{sW}")
            self.divmod_s(T[1], T[2], T[0], 5)
            a(f"s_mul_i32 s{dbase}, s{T[1]}, {per*1024}")
            a(f"s_add_u32 s{dbase}, s{dbase}, {region}")
            a(f"s_lshr_b32 s{T[0]}, s{T[2]}, 1")
            a(f"s_lshl_b32 s{T[0]}, s{T[0]}, 11")
            a(f"s_add_u32 s{dbase}, s{dbase}, s{T[0]}")
            a(f"s_and_b32 s{T[0]}, s{T[2]}, 1")
            a(f"s_lshl_b32 s{T[0]}, s{T[0]}, 7")
            a(f"s_add_u32 s{dbase}, s{dbase}, s{T[0]}")
            a(f"s_cmp_eq_u32 s{T[2]}, 4")
            a(f"s_cselect_b32 s{dhi}, 0, {1024-128}")

        def lane_store_off(dhi):
            a(f"v_lshrrev_b32 v{vSt}, 3, v{vM}")
            a(f"v_mul_lo_u32 v{vSt}, v{vSt}, s{dhi}")
            a(f"v_add_u32 v{vSt}, v{vSt}, v{vL16}")
        out_tile_dest(sCD, WDP, 272, T[5], T[6])
        lane_store_off(T[6])
        a(f"s_mul_i32 s{T[0]}, s{sK18}, {15*1024}")
        a(f"s_add_u32 s{T[5]}, s{T[5]}, s{T[0]}")
        a(f"v_lshl_add_u32 v{vT}, v{vGa}, 3, v{vR}")
        a(f"v_lshl_add_u32 v{vT}, v{vGb}, 2, v{vT}")
        a(f"s_cmp_lt_u32 s{sK18}, 16")
        a(f"s_cselect_b64 vcc, -1, 0")
        a(f"s_mov_b32 s{T[0]}, 512")
        a(f"s_cselect_b32 s{T[0]}, 2048, s{T[0]}")
        a(f"v_cndmask_b32 v{vT}, v{vTr}, v{vT}, vcc")
        a(f"v_lshl_add_u32 v{vT}, v{vT}, 7, v{vPerm}")
        a(f"v_add_u32 v{vT}, {LDS_D2}, v{vT}")
        a(f"v_add_u32 v{vT+1}, s{T[0]}, v{vT}")
        f = 128
        for sl in range(3):
            a(f"ds_read_b64_tr_b16 {q(f+4*sl,2)}, v{vT} offset:{sl*4096}")
            a(f"ds_read_b64_tr_b16 {q(f+4*sl+2,2)}, v{vT+1} offset:{sl*4096}")
        a("s_waitcnt lgkmcnt(0)")
        for sl in range(3):
            a.vmem(f"buffer_store_dwordx4 {q(f+4*sl)}, v{vSt}, {srd(S_WSD)}, s{T[5]} offen sc1", "stD")
            a(f"s_add_u32 s{T[5]}, s{T[5]}, 5120")

        a(f"s_mul_i32 s{T[2]}, s{sK4}, 160")
        a(f"s_mul_i32 s{T[3]}, s{sCS}, 80")
        a(f"s_sub_u32 s{T[3]}, s{T[3]}, 160")
        a(f"v_min_u32 v{vT}, 239, v0")
        a(f"v_cmp_gt_u32 vcc, 160, v{vT}")
        for i, (lo, hi) in enumerate(((2560, 1280), (1920, 3200))):
            a(f"s_add_u32 s{T[0]}, s{T[2]}, {lo}")
            a(f"s_add_u32 s{T[1]}, s{T[3]}, {hi}")
            a(f"v_mov_b32 v{vT+1}, s{T[0]}")
            a(f"v_mov_b32 v{vT+2}, s{T[1]}")
            a(f"v_cndmask_b32 v{vT+1}, v{vT+2}, v{vT+1}, vcc")
            a(f"v_add_u32 v{vT+1}, v{vT+1}, v{vT}")
            a(f"v_lshrrev_b32 v{vT+2}, 6, v{vT+1}")
            a(f"v_and_b32 v{vT+1}, 63, v{vT+1}")
            a(f"v_mul_u32_u24 v{vT+2}, 5120, v{vT+2}")
            a(f"v_lshl_add_u32 v{vT+4+i}, v{vT+1}, 3, v{vT+2}")
        self.gather_mod([vT + 4, vT + 5], 140, [vT + 6, vT + 7])
        a(f"v_cvt_pk_bf16_f32 v{vT+6}, v{vT+6}, v{vT+6}")
        a(f"v_cvt_pk_bf16_f32 v{vT+7}, v{vT+7}, v{vT+7}")
        a(f"v_lshlrev_b32 v{vT+2}, 1, v0")
        a(f"v_add_u32 v{vT+2}, {T_SB}, v{vT+2}")
        a(f"ds_write_b16 v{vT+2}, v{vT+7}")
        a(f"v_and_b32 v{vT+6}, 0xffff0000, v{vT+6}")
        a(f"v_and_b32 v{vT+7}, 0xffff0000, v{vT+7}")
        a(f"v_add_f32 v{vT+3}, 1.0, v{vT+6}")
        a(f"v_cvt_pk_bf16_f32 v{vT+3}, v{vT+3}, v{vT+3}")
        a(f"v_and_b32 v{vT+3}, 0xffff0000, v{vT+3}")
        a(f"s_cmp_lt_u32 s{sL}, 216")
        a(f"s_cselect_b64 vcc, -1, 0")
        a(f"v_cndmask_b32 v{vT+3}, 1.0, v{vT+3}, vcc")
        a(f"v_cmp_gt_u32 vcc, 160, v0")
        a(f"v_cndmask_b32 v{vT+6}, v{vT+6}, v{vT+3}, vcc")
        a(f"v_lshlrev_b32 v{vT+2}, 2, v0")
        a(f"v_add_u32 v{vT+2}, {T_GA}, v{vT+2}")
        a(f"ds_write_b32 v{vT+2}, v{vT+6}")
        a(f"ds_write_b32 v{vT+2}, v{vT+7} offset:1024")
        a(f"s_cmp_lt_u32 s{sL}, 216")
        a(f"s_cselect_b64 vcc, -1, 0")
        a(f"s_mov_b32 s{T[3]}, {20*128}")
        a(f"s_cselect_b32 s{T[3]}, {4*128}, s{T[3]}")
        a(f"s_mov_b32 s{T[4]}, {40*128}")
        a(f"s_cselect_b32 s{T[4]}, {32*128}, s{T[4]}")
        a(f"v_lshl_add_u32 v{vT}, v{vG}, 2, v{vR}")
        a(f"v_cndmask_b32 v{vT}, v{vT}, v{vTr}, vcc")
        a(f"v_mul_u32_u24 v{vT+8}, 80, v{vGb}")
        a(f"v_lshl_add_u32 v{vT+8}, v{vGa}, 3, v{vT+8}")
        a(f"v_add_u32 v{vT+8}, 64, v{vT+8}")
        a(f"v_mad_u32_u24 v{vT+1}, v{vG}, 40, 16")
        a(f"v_cndmask_b32 v{vT+1}, v{vT+1}, v{vT+8}, vcc")
        a(f"v_add_u32 v{vT+1}, v{vT+1}, v{vR}")
        a(f"v_lshl_add_u32 v{vT}, v{vT}, 7, v{vPerm}")
        a(f"v_lshl_add_u32 v{vT+1}, v{vT+1}, 7, v{vPerm}")
        a(f"v_add_u32 v{vT+2}, s{T[4]}, v{vT}")
        for k in range(3):
            a(f"v_add_u32 v{vT+3+k}, s{T[3]}, v{vT+k}")
        f = 128
        for ksl in range(5):
            b = (vT, vT + 2, vT, vT + 2, vT + 1)[ksl]
            off = LDS_D + (80 * 128 if ksl in (2, 3) else 0)
            a(f"ds_read_b64_tr_b16 {q(f+4*ksl,2)}, v{b} offset:{off}")
            a(f"ds_read_b64_tr_b16 {q(f+4*ksl+2,2)}, v{b+3} offset:{off}")
        out_tile_dest(sCB, WOP, 104, T[5], T[6])
        a(f"s_mov_b32 s{T[7]}, 5120")
        lab = a.label("wo")
        a(f"s_mov_b32 s{T[8]}, {OOB}")
        a(f"s_cmp_ge_u32 s{sL}, 216")
        a(f"s_cbranch_scc1 {lab}")
        a(f"s_lshl_b32 s{T[0]}, s{sCB}, 2")
        a(f"s_add_u32 s{T[0]}, s{T[0]}, s{sW}")
        a(f"s_sub_u32 s{T[1]}, s{T[0]}, 96")
        a(f"s_cmp_ge_u32 s{T[0]}, 102")
        a(f"s_cselect_b32 s{T[2]}, 2, 0")
        a(f"s_add_u32 s{T[1]}, s{T[1]}, s{T[2]}")
        a(f"s_mov_b32 s{T[2]}, 6")
        a(f"s_sub_u32 s{T[3]}, s{T[0]}, 64")
        a(f"s_lshr_b32 s{T[3]}, s{T[3]}, 1")
        a(f"s_and_b32 s{T[4]}, s{T[0]}, 1")
        a(f"s_add_u32 s{T[4]}, s{T[4]}, 4")
        a(f"s_cmp_lt_u32 s{T[0]}, 96")
        a(f"s_cselect_b32 s{T[1]}, s{T[3]}, s{T[1]}")
        a(f"s_cselect_b32 s{T[2]}, s{T[4]}, s{T[2]}")
        a(f"s_cmp_lt_u32 s{T[0]}, 64")
        a(f"s_cselect_b32 s{T[1]}, s{sCB}, s{T[1]}")
        a(f"s_cselect_b32 s{T[2]}, s{sW}, s{T[2]}")
        a(f"s_mov_b32 s{T[7]}, 6144")
        a(f"s_cselect_b32 s{T[7]}, 8192, s{T[7]}")
        a(f"s_cselect_b32 s{T[3]}, 0, {152*1024}")
        a(f"s_lshl_b32 s{T[2]}, s{T[2]}, 1")
        a(f"s_add_u32 s{T[2]}, s{T[2]}, s25")
        a(f"s_mul_i32 s{T[5]}, s{T[1]}, {280*1024}")
        a(f"s_add_u32 s{T[5]}, s{T[5]}, s{T[3]}")
        a(f"s_lshl_b32 s{T[3]}, s{T[2]}, 10")
        a(f"s_add_u32 s{T[5]}, s{T[5]}, s{T[3]}")
        a(f"s_add_u32 s{T[5]}, s{T[5]}, {WGU}")
        a(f"s_mov_b32 s{T[6]}, 0")
        a(f"s_lshl_b32 s{T[8]}, s{T[1]}, 2")
        a(f"s_add_u32 s{T[8]}, s{T[8]}, s{sK4}")
        a(f"s_mul_i32 s{T[8]}, s{T[8]}, 1792")
        a(f"s_lshl_b32 s{T[3]}, s{T[2]}, 6")
        a(f"s_add_u32 s{T[8]}, s{T[8]}, s{T[3]}")
        a(f"s_add_u32 s{T[8]}, s{T[8]}, {UV2P}")
        a(f"{lab}:")
        lane_store_off(T[6])
        a(f"s_add_u32 s{T[0]}, s{sK4}, 16")
        a(f"s_mul_i32 s{T[0]}, s{T[0]}, s{T[7]}")
        a(f"s_add_u32 s{T[9]}, s{T[5]}, s{T[0]}")
        a(f"s_lshl_b32 s{T[0]}, s{sK4}, 2")
        a(f"s_mul_i32 s{T[0]}, s{T[0]}, s{T[7]}")
        a(f"s_add_u32 s{T[5]}, s{T[5]}, s{T[0]}")
        a(f"v_lshlrev_b32 v{vT}, 5, v{vG}")
        a(f"v_add_u32 v{vT}, {T_GA}, v{vT}")
        a(f"v_lshlrev_b32 v{vT+1}, 2, v{vT+8}")
        a(f"v_add_u32 v{vT+1}, {T_GA}, v{vT+1}")
        a(f"v_lshlrev_b32 v{vT+2}, 4, v{vG}")
        a(f"v_add_u32 v{vT+2}, {T_SB}, v{vT+2}")
        a(f"v_lshlrev_b32 v{vT+3}, 1, v{vT+8}")
        a(f"v_add_u32 v{vT+3}, {T_SB}, v{vT+3}")
        a(f"v_lshlrev_b32 v{vT+4}, 4, v{vG}")
        a(f"v_mov_b32 v{vT+5}, {OOB}")
        a(f"v_cmp_eq_u32 vcc, 0, v{vM}")
        a(f"v_cndmask_b32 v{vT+4}, v{vT+5}, v{vT+4}, vcc")
        a("s_waitcnt lgkmcnt(0)")
        a("s_barrier")
        sb, sc, o, pu, pv, ones = 148, 64, 168, 188, 192, 196
        for ksl in range(5):
            row = (0, 32, 80, 112, 0)[ksl]
            k = 1 if ksl == 4 else 0
            a(f"ds_read_b128 {q(sc+8*ksl)}, v{vT+k} offset:{row*4}")
            a(f"ds_read_b128 {q(sc+8*ksl+4)}, v{vT+k} offset:{row*4+16}")
            a(f"ds_read_b128 {q(sb+4*ksl)}, v{vT+2+k} offset:{row*2}")
        for d in range(4):
            a(f"v_mov_b32 v{ones+d}, 0x3f803f80")
        a("s_waitcnt lgkmcnt(0)")
        for ksl in range(5):
            a(f"v_mfma_f32_16x16x32_bf16 {q(pv)}, {q(f+4*ksl)}, {q(sb+4*ksl)}, {q(pv) if ksl else 0}")
            self.scale_frag(o + 4 * ksl, f + 4 * ksl, sc + 8 * ksl, vT + 12)
            a.vmem(f"buffer_store_dwordx4 {q(o+4*ksl)}, v{vSt}, {srd(S_WS)}, s{T[5] if ksl < 4 else T[9]} offen sc1", "stD")
            a(f"v_mfma_f32_16x16x32_bf16 {q(pu)}, {q(o+4*ksl)}, {q(ones)}, {q(pu) if ksl else 0}")
            if ksl < 3:
                a(f"s_add_u32 s{T[5]}, s{T[5]}, s{T[7]}")
        a.vmem(f"buffer_store_dwordx4 {q(pu)}, v{vT+4}, {srd(S_WS)}, s{T[8]} offen sc1", "stD")
        a.vmem(f"buffer_store_dwordx4 {q(pv)}, v{vT+4}, {srd(S_WS)}, s{T[8]} offen offset:896 sc1", "stD")
        self.publish(EV_WD, "stD")
        self.stamp()

    def ln_finish(self, s1, s2, t):
        a = self.a
        a(f"v_mul_f32 v{s1}, 0x3acccccd, v{s1}")
        a(f"v_mul_f32 v{s2}, 0x3acccccd, v{s2}")
        a(f"v_fma_f32 v{s2}, -v{s1}, v{s1}, v{s2}")
        a(f"v_max_f32 v{s2}, 0, v{s2}")
        a(f"v_add_f32 v{s2}, 0x3727c5ac, v{s2}")
        a(f"v_rsq_f32 v{s2}, v{s2}")
        a(f"v_mul_f32 v{s1}, v{s1}, v{s2}")
        a(f"v_sub_f32 v{s1}, 0, v{s1}")

    def finish(self):
        a = self.a
        if self.stamps:
            self.stamp()
            a(f"s_lshl_b32 s{T[0]}, s{sL}, 10")
            a(f"s_add_u32 s{T[0]}, s{T[0]}, {STAMP}")
            a(f"v_lshlrev_b32 v{vT+1}, 2, v0")
            a(f"buffer_store_dword v255, v{vT+1}, {srd(S_WS)}, s{T[0]} offen")
        a("L_end:")
        a("s_endpgm")

    def epoch_update(self):
        a = self.a
        a(f"s_cmp_eq_u32 s{sL}, 0")
        a(f"s_cselect_b32 s{T[0]}, 0, {OOB}")
        a.vmem(f"buffer_store_dword v{vNonce}, v{vFlag}, {srd(S_WS)}, s{T[0]} offen sc1", "flag")

    def build(self):
        import phases
        self.prologue()
        self.phase0()
        phases.rest(self)
        self.finish()
        body = self.a.text()
        hdr = open(f"cdna_kernels/{NAME}.s.ref").read().split("; Override")[0]
        return (hdr + f"; @launch grid=(256,1,1) block=(256,1,1) lds={LDS_BYTES}\n"
                '.amdgcn_target "amdgcn-amd-amdhsa--gfx950"\n.text\n'
                f".globl {NAME}_kernel\n.p2align 8\n.type {NAME}_kernel,@function\n{NAME}_kernel:\n"
                + body + "\n.fill 8192, 4, 0xbf800000\n"
                '.section .rodata,"a"\n.p2align 6\n'
                f".amdhsa_kernel {NAME}_kernel\n"
                "  .amdhsa_next_free_vgpr 512\n  .amdhsa_next_free_sgpr 102\n  .amdhsa_accum_offset 256\n"
                "  .amdhsa_group_segment_fixed_size 0\n  .amdhsa_kernarg_size 96\n  .amdhsa_user_sgpr_count 2\n"
                "  .amdhsa_user_sgpr_kernarg_segment_ptr 1\n  .amdhsa_system_sgpr_workgroup_id_x 1\n"
                "  .amdhsa_float_denorm_mode_32 3\n"
                ".end_amdhsa_kernel\n")


if __name__ == "__main__":
    import argparse
    p = argparse.ArgumentParser()
    p.add_argument("-o", default=f"cdna_kernels/{NAME}.s")
    p.add_argument("--stop", type=int, default=99)
    p.add_argument("--stamps", action="store_true")
    p.add_argument("--mapping", default="4x2")
    args = p.parse_args()
    g = Gen(stop=args.stop, stamps=args.stamps, mapping=args.mapping)
    open(args.o, "w").write(g.build())
    print("written", args.o, "instructions", len(g.a.L), "pads", g.a.npad)
```

```python
import sys
from asmlib import Asm

NAME = "adaLN_cond__sliding_local_dilated__glu_gated_bilinear__prompt"

FLAG = 0x10000
MODP = 0x60000
V1P = 0xB0000
UV2P = 0xD0000
ST2 = 0xF0000
XH = 0x200000
WQ = 0x500000
WOP = 0x800000
WGU = 0x900000
WDP = 0xE00000
OP = 0x1100000
X2P = 0x1400000
HH = 0x1700000
STAMP = 0x1E00000
WS_SIZE = 0x2000000
OOB = 0x40000000
EV_XH, EV_WQ, EV_WD, EV_O, EV_X2, EV_HA, EV_HB = range(7)

RING_G = 17
LDS_H = 0x22000
LDS_T = 0x27000
T_GA = LDS_T
T_GB = LDS_T + 1024
T_UV = LDS_T + 2048
LDS_A, LDS_B, LDS_C, LDS_D, LDS_D2 = 0x0, 0x6000, 0x9000, 0xC000, 0x11000
T_S, T_16B, T_32B, T_SB = 0x14000, 0x14200, 0x14400, 0x14800
LDS_BYTES = 0x28000

S_X, S_WS, S_OUT, S_MOD, S_C, S_WQ, S_D1, S_D2, S_WSA, S_WSB, S_WSD = 28, 32, 36, 40, 44, 48, 52, 56, 4, 8, 12
sW, sI, sJ, sL, sN, sW2K, sDma, sCnt = 60, 61, 62, 63, 64, 65, 66, 67
sBQ, sBO, sBG, sBD, sMT2, sMT1, sCS = 68, 69, 70, 71, 72, 73, 74
T = list(range(75, 88))
sStamp = 88

vLane, vL16, vL16b, vL16c, vG, vM, vDma = 1, 2, 3, 4, 5, 6, 7
vDmaV = [8, 9, 10]
vFlag = 11
vXr = 12
vNonce, vPoll = 22, 23
vT = 24
vWB = 64
vAcc = 128


def srd(b):
    return f"s[{b}:{b+3}]"


def q(b, n=4, k="v"):
    return f"{k}[{b}:{b+n-1}]"


class Gen:
    def __init__(self, stop=99, stamps=False, mapping="4x2", dist=4):
        self.a = Asm()
        self.stop, self.stamps, self.mapping, self.dist = stop, stamps, mapping, dist
        self.nstamp = 0
        self.ds = []
        self.groups = []
        self.g_issue = 0
        self.g_half = False
        self.g_synced = 0
        self.g_limit = 0
        self.f_consumed = 0
        self.f_free = 0

    def stamp(self):
        if not self.stamps:
            return
        a = self.a
        a("s_waitcnt lgkmcnt(0)")
        self.ds = []
        a(f"s_memrealtime s[{T[11-1]+1}:{T[11-1]+2}]")
        a("s_waitcnt lgkmcnt(0)")
        a(f"v_writelane_b32 v255, s{T[11-1]+1}, {self.nstamp}")
        self.nstamp += 1

    def dsop(self, s, tag=None):
        if len(self.ds) >= 15:
            self.a("s_waitcnt lgkmcnt(14)")
            del self.ds[:len(self.ds) - 14]
        self.a(s)
        self.ds.append(tag)

    def wait_ds(self, tags=None):
        if tags is None:
            self.a("s_waitcnt lgkmcnt(0)")
            self.ds = []
            return
        idx = max((i for i, t in enumerate(self.ds) if t in tags), default=-1)
        if idx >= 0:
            n = len(self.ds) - 1 - idx
            self.a(f"s_waitcnt lgkmcnt({min(n, 15)})")
            if n <= 15:
                del self.ds[:idx + 1]
            else:
                del self.ds[:len(self.ds) - 15]

    def mksrd(self, d, p, size):
        a = self.a
        a(f"s_mov_b32 s{d}, s{p}")
        a(f"s_mov_b32 s{d+1}, s{p+1}")
        a(f"s_mov_b32 s{d+2}, {size}")
        a(f"s_mov_b32 s{d+3}, 0x20000")

    def divmod_s(self, dq, dr, src, n):
        a = self.a
        mul = (1 << 16) // n + 1
        assert all((x * mul) >> 16 == x // n for x in range(1024))
        a(f"s_mul_i32 s{dq}, s{src}, {mul}")
        a(f"s_lshr_b32 s{dq}, s{dq}, 16")
        a(f"s_mul_i32 s{dr}, s{dq}, {n}")
        a(f"s_sub_u32 s{dr}, s{src}, s{dr}")

    def divmod_v(self, dq, dr, src, n):
        a = self.a
        mul = (1 << 16) // n + 1
        assert all((x * mul) >> 16 == x // n for x in range(1024))
        a(f"v_mul_u32_u24 v{dq}, {mul}, v{src}")
        a(f"v_lshrrev_b32 v{dq}, 16, v{dq}")
        a(f"v_mul_u32_u24 v{dr}, {n}, v{dq}")
        a(f"v_sub_u32 v{dr}, v{src}, v{dr}")

    def barrier(self):
        self.a("s_barrier")
        self.f_free = self.f_consumed

    def publish(self, ev, tags):
        a = self.a
        a.wait_vm(tags)
        self.barrier()
        a(f"s_mov_b32 s{T[0]}, {FLAG + ev*0x8000}")
        a.vmem(f"buffer_store_dword v{vNonce}, v{vFlag}, {srd(S_WS)}, s{T[0]} offen sc1", "flag")

    def poll(self, ev, n=1, wave=3):
        a = self.a
        lp, sk = a.label("poll"), a.label("ready")
        a(f"s_cmp_lg_u32 s{sW}, {wave}")
        a(f"s_cbranch_scc1 {sk}")
        a(f"s_mov_b32 s{sCnt}, 0")
        a(f"{lp}:")
        for k in range(n):
            a(f"s_mov_b32 s{T[0]}, {FLAG + ev*0x8000 + k*0x2000}")
            a(f"buffer_load_dword v{vT+k}, v{vPoll}, {srd(S_WS)}, s{T[0]} offen sc1")
        a("s_waitcnt vmcnt(0)")
        for k in range(n):
            a(f"v_xor_b32 v{vT+k}, s{sN}, v{vT+k}")
        for k in range(1, n):
            a(f"v_or_b32 v{vT}, v{vT}, v{vT+k}")
        a(f"v_cmp_ne_u32 vcc, 0, v{vT}")
        a(f"s_cbranch_vccz {sk}")
        a(f"s_add_u32 s{sCnt}, s{sCnt}, 1")
        a(f"s_cmp_lt_u32 s{sCnt}, 20000")
        a(f"s_cbranch_scc1 {lp}")
        a(f"{sk}:")
        self.barrier()

    def gather_mod(self, addrs, base, outs):
        a = self.a
        lp, sk = a.label("gat"), a.label("gdone")
        a(f"s_mov_b32 s{sCnt}, 0")
        a(f"s_mov_b32 s{T[0]}, {MODP}")
        a(f"s_mov_b32 s{T[1]}, {MODP + 2560}")
        a(f"{lp}:")
        for i, ad in enumerate(addrs):
            for k in range(10):
                r = base + 20 * i + 2 * k
                a(f"buffer_load_dwordx2 {q(r,2)}, v{ad}, {srd(S_WS)}, s{T[k//5]} offen offset:{(k%5)*512} sc1")
        a.wait_vm_all()
        tags = [base + 20 * i + 2 * k + 1 for i in range(len(addrs)) for k in range(10)]
        for r in tags:
            a(f"v_xor_b32 v{r}, s{sN}, v{r}")
        for k in range(1, len(tags) - 1, 2):
            a(f"v_or3_b32 v{tags[0]}, v{tags[0]}, v{tags[k]}, v{tags[k+1]}")
        a(f"v_or_b32 v{tags[0]}, v{tags[0]}, v{tags[-1]}")
        a(f"v_cmp_ne_u32 vcc, 0, v{tags[0]}")
        a(f"s_cbranch_vccz {sk}")
        a(f"s_add_u32 s{sCnt}, s{sCnt}, 1")
        a(f"s_cmp_lt_u32 s{sCnt}, 20000")
        a(f"s_cbranch_scc1 {lp}")
        a(f"{sk}:")
        for i, o in enumerate(outs):
            b = base + 20 * i
            for k in range(5):
                a(f"v_add_f32 v{b+4*k}, v{b+4*k}, v{b+4*k+2}")
            a(f"v_add_f32 v{b}, v{b}, v{b+4}")
            a(f"v_add_f32 v{b+8}, v{b+8}, v{b+12}")
            a(f"v_add_f32 v{b}, v{b}, v{b+16}")
            a(f"v_add_f32 v{o}, v{b}, v{b+8}")

    def scale_frag(self, dst, src, sc, tmp):
        a = self.a
        for d in range(4):
            a(f"v_lshlrev_b32 v{tmp+2*d}, 16, v{src+d}")
            a(f"v_and_b32 v{tmp+2*d+1}, 0xffff0000, v{src+d}")
        for d in range(4):
            a(f"v_pk_mul_f32 {q(tmp+2*d,2)}, {q(tmp+2*d,2)}, {q(sc+2*d,2)}")
        for d in range(4):
            a(f"v_cvt_pk_bf16_f32 v{dst+d}, v{tmp+2*d}, v{tmp+2*d+1}")

    def add_groups(self, sbase, n, voff):
        for k in range(n):
            self.groups.append((sbase, k * 8192) + voff(k))

    def can_issue(self):
        g = self.g_issue
        if self.g_half:
            return True
        return g < min(self.g_limit, len(self.groups)) and (g - RING_G + 1) * 8 <= self.f_free

    def issue_half(self):
        a = self.a
        g = self.g_issue
        sbase, off, va, vb = self.groups[g]
        if not self.g_half:
            a(f"s_add_u32 m0, s{sW2K}, {(g % RING_G) * 8192}")
            a(f"s_add_u32 s{sDma}, s{sbase}, {off}")
            a.vmem(f"buffer_load_dwordx4 v{va}, {srd(S_WS)}, s{sDma} offen sc1 lds", ("w", g))
            self.g_half = True
        else:
            a.vmem(f"buffer_load_dwordx4 v{vb}, {srd(S_WS)}, s{sDma} offen offset:1024 sc1 lds", ("w", g))
            self.g_half = False
            self.g_issue += 1

    def issue_groups(self, n=999):
        while n > 0 and self.can_issue():
            self.issue_half()
            if not self.g_half:
                n -= 1

    def sync_groups(self, upto):
        while self.g_issue < upto:
            assert self.can_issue(), (self.g_issue, upto, self.f_free)
            self.issue_half()
        self.a.wait_vm(lambda t: isinstance(t, tuple) and t[0] == "w" and t[1] < upto)
        self.barrier()
        self.g_synced = max(self.g_synced, upto)

    @staticmethod
    def ring_addr(f, bases=(vL16, vL16b, vL16c), tile0=False):
        off = ((f // 8) % RING_G) * 8192 + (0 if tile0 else (f % 8) * 1024)
        return bases[off >> 16], off & 0xFFFF

    def gemm(self, reads, ops, f_end, fillers, every=4, sync_every=2, nb=None):
        a, dist = self.a, self.dist
        nb = nb or dist + 4
        last = {}
        for k, (ids, _, _) in enumerate(ops):
            for i in ids:
                last[i] = k
        g_end = (f_end + 7) // 8
        nr = 0
        next_bar = None
        for k, (ids, tpl, tag) in enumerate(ops):
            want = min(max(ids) + dist, len(reads) - 1)
            while nr <= want and (nr < nb or last.get(nr - nb, -1) < k):
                reg, off, f = reads[nr]
                if f is not None:
                    g = f // 8
                    if next_bar is None:
                        next_bar = g
                    if g >= self.g_synced or g >= next_bar:
                        self.sync_groups(max(min(g + sync_every, g_end), min(self.g_synced, g_end)))
                        next_bar = g + sync_every
                self.dsop(f"ds_read_b128 {q(vWB + 4*(nr % nb))}, v{reg} offset:{off}", ("r", nr))
                nr += 1
            assert nr > max(ids)
            if tag is not None:
                while fillers and tag not in a.vm and any(getattr(f, "tag", None) == tag for f in fillers):
                    fillers.pop(0)()
                a.wait_vm(tag)
            self.wait_ds({("r", i) for i in ids})
            a(tpl.format(*[q(vWB + 4 * (i % nb)) for i in ids]))
            done = [reads[i][2] for i in range(nr) if reads[i][2] is not None and last[i] > k]
            self.f_consumed = max(self.f_consumed, min(done) if done else (reads[nr][2] if nr < len(reads) and reads[nr][2] is not None else self.f_consumed))
            if k % every == every - 1:
                if self.g_half:
                    self.issue_half()
                elif fillers:
                    fillers.pop(0)()
                elif self.can_issue():
                    self.issue_half()
        while fillers:
            fillers.pop(0)()
        if self.g_half:
            self.issue_half()
        self.f_consumed = g_end * 8

    def aload(self, areg, sbase, off, tag):
        def f():
            a = self.a
            if f.first:
                a(f"s_add_u32 s{T[2]}, s{sbase}, {off & ~0xFFF}")
            a.vmem(f"buffer_load_dwordx4 {q(areg,4,'a')}, v{vL16}, {srd(S_WS)}, s{T[2]} offen offset:{off & 0xFFF} sc1", tag)
        f.tag = tag
        f.first = True
        return f

    def prologue(self):
        a = self.a
        a("s_cmp_ge_u32 s2, 256")
        a("s_cbranch_scc1 L_end")
        a("s_load_dwordx16 s[4:19], s[0:1], 0")
        a("s_load_dwordx8 s[20:27], s[0:1], 64")
        if self.stamps:
            a(f"s_memrealtime s[{T[10]+1}:{T[10]+2}]")
        a(f"v_and_b32 v{vLane}, 63, v0")
        a(f"v_lshrrev_b32 v{vT}, 6, v0")
        a(f"v_lshlrev_b32 v{vL16}, 4, v{vLane}")
        a(f"v_readfirstlane_b32 s{sW}, v{vT}")
        a(f"v_add_u32 v{vL16b}, 0x10000, v{vL16}")
        a(f"v_add_u32 v{vL16c}, 0x20000, v{vL16}")
        a(f"v_lshrrev_b32 v{vG}, 4, v{vLane}")
        a(f"v_and_b32 v{vM}, 15, v{vLane}")
        a(f"s_and_b32 s{T[0]}, s2, 7")
        a(f"s_lshr_b32 s{T[1]}, s2, 3")
        if self.mapping == "4x2":
            a(f"s_lshr_b32 s{sI}, s{T[0]}, 1")
            a(f"s_lshl_b32 s{sI}, s{sI}, 2")
            a(f"s_lshr_b32 s{T[2]}, s{T[1]}, 3")
            a(f"s_add_u32 s{sI}, s{sI}, s{T[2]}")
            a(f"s_and_b32 s{sJ}, s{T[0]}, 1")
            a(f"s_lshl_b32 s{sJ}, s{sJ}, 3")
            a(f"s_and_b32 s{T[2]}, s{T[1]}, 7")
            a(f"s_add_u32 s{sJ}, s{sJ}, s{T[2]}")
        else:
            a(f"s_lshl_b32 s{sI}, s{T[0]}, 1")
            a(f"s_lshr_b32 s{T[2]}, s{T[1]}, 4")
            a(f"s_add_u32 s{sI}, s{sI}, s{T[2]}")
            a(f"s_and_b32 s{sJ}, s{T[1]}, 15")
        a(f"s_lshl_b32 s{sL}, s{sI}, 4")
        a(f"s_add_u32 s{sL}, s{sL}, s{sJ}")
        a(f"s_lshl_b32 s{sW2K}, s{sW}, 11")
        a(f"v_add_u32 v{vDma}, s{sW2K}, v{vL16}")
        a(f"s_and_b32 s{sCS}, s{sJ}, 7")
        a(f"s_mul_i32 s{sBQ}, s{sJ}, {160*1024}")
        a(f"s_add_u32 s{sBQ}, s{sBQ}, {WQ}")
        a(f"s_mul_i32 s{sBO}, s{sCS}, {104*1024}")
        a(f"s_add_u32 s{sBO}, s{sBO}, {WOP}")
        a(f"s_mul_i32 s{sBG}, s{sJ}, {280*1024}")
        a(f"s_add_u32 s{sBG}, s{sBG}, {WGU}")
        a(f"s_mul_i32 s{sBD}, s{sCS}, {272*1024}")
        a(f"s_add_u32 s{sBD}, s{sBD}, {WDP}")
        a(f"s_lshl_b32 s{sMT2}, s{sI}, 3")
        a(f"s_lshr_b32 s{T[2]}, s{sJ}, 3")
        a(f"s_lshl_b32 s{T[2]}, s{T[2]}, 2")
        a(f"s_add_u32 s{sMT1}, s{sMT2}, s{T[2]}")
        a(f"s_add_u32 s{sMT1}, s{sMT1}, s{sW}")
        a(f"s_lshl_b32 s{T[2]}, s{sW}, 1")
        a(f"s_add_u32 s{sMT2}, s{sMT2}, s{T[2]}")
        a(f"s_lshl_b32 s{T[2]}, s{sL}, 7")
        a(f"v_mov_b32 v{vT}, s{T[2]}")
        a(f"v_mov_b32 v{vFlag}, {OOB}")
        a("v_cmp_eq_u32 vcc, 0, v0")
        a(f"v_cndmask_b32 v{vFlag}, v{vFlag}, v{vT}, vcc")
        a("s_waitcnt lgkmcnt(0)")
        if self.stamps:
            a("v_mov_b32 v255, 0")
            a(f"v_writelane_b32 v255, s{T[10]+1}, 0")
            self.nstamp = 1
        a(f"s_load_dword s{sN}, s[26:27], 0")
        self.mksrd(S_MOD, 20, 640 * 3840 * 2)
        self.mksrd(S_C, 18, 1280)
        a(f"s_cmp_ge_u32 s{sL}, 56")
        a(f"s_cselect_b32 s{S_MOD+2}, s{S_MOD+2}, 0")
        self.mksrd(S_WQ, 6, 640 * 1920 * 2)
        self.mksrd(S_X, 4, 2048 * 1280)
        self.mksrd(S_WS, 26, WS_SIZE)
        self.mksrd(S_OUT, 22, 2048 * 1280)
        self.mksrd(S_D2, 16, 1728 * 1280)
        a(f"s_cmp_lt_u32 s{sL}, 108")
        a(f"s_cselect_b32 s{S_D1}, s12, s14")
        a(f"s_cselect_b32 s{S_D1+1}, s13, s15")
        a(f"s_cmp_lt_u32 s{sL}, 216")
        a(f"s_cselect_b32 s{S_D1}, s{S_D1}, s8")
        a(f"s_cselect_b32 s{S_D1+1}, s{S_D1+1}, s9")
        a(f"s_mov_b32 s{S_D1+2}, {640*1280}")
        a(f"s_cselect_b32 s{S_D1+2}, {640*3456}, s{S_D1+2}")
        a(f"s_mov_b32 s{S_D1+3}, 0x20000")
        for d, cmp_ in ((S_WSA, f"s_cmp_ge_u32 s{sL}, 56"), (S_WSB, f"s_cmp_lt_u32 s{sL}, 240"), (S_WSD, f"s_cmp_lt_u32 s{sL}, 180")):
            self.mksrd(d, 26, WS_SIZE)
            a(cmp_)
            a(f"s_cselect_b32 s{d+2}, s{d+2}, 0")

    def phase0(self):
        a = self.a
        sKA, sGA, sKB, sGB, sK4, sCB, sK18, sCD = 16, 17, 18, 19, 20, 21, 22, 23
        sPitch = 24
        vA, vB0, vC, vD, vX = 200, 201, 204, 205, 208
        vTr, vR, vCc = 220, 221, 222
        a(f"s_sub_u32 s{T[0]}, 255, s{sL}")
        a(f"s_min_u32 s{T[0]}, s{T[0]}, 199")
        self.divmod_s(sGA, sKA, T[0], 10)
        a(f"s_min_u32 s{T[0]}, s{sL}, 239")
        self.divmod_s(sGB, sKB, T[0], 10)
        a(f"s_min_u32 s{T[0]}, s{sL}, 179")
        self.divmod_s(sCD, sK18, T[0], 18)
        self.divmod_s(T[1], T[0], sL, 108)
        a(f"s_mov_b32 s25, s{T[1]}")
        a(f"s_and_b32 s{sK4}, s{T[0]}, 3")
        a(f"s_lshr_b32 s{sCB}, s{T[0]}, 2")
        a(f"s_cmp_lt_u32 s{sL}, 216")
        a(f"s_mov_b32 s{sPitch}, 1280")
        a(f"s_cselect_b32 s{sPitch}, 3456, s{sPitch}")
        a(f"v_lshlrev_b32 v{vT}, 1, v{vLane}")
        a(f"s_lshl_b32 s{T[0]}, s{sKA}, 7")
        a.vmem(f"buffer_load_ushort v{vT+1}, v{vT}, {srd(S_C)}, s{T[0]} offen", "c")
        a(f"v_lshrrev_b32 v{vT+2}, 3, v{vLane}")
        a(f"v_and_b32 v{vT+3}, 7, v{vLane}")
        a(f"v_lshlrev_b32 v{vT+3}, 4, v{vT+3}")
        a(f"s_lshl_b32 s{T[0]}, s{sW}, 4")
        a(f"v_add_u32 v{vT+4}, s{T[0]}, v{vT+2}")
        a(f"v_mul_u32_u24 v{vA}, 7680, v{vT+4}")
        a(f"v_add_u32 v{vA}, v{vA}, v{vT+3}")
        a(f"s_mul_i32 s{T[3]}, s{sKA}, {64*7680}")
        a(f"s_lshl_b32 s{T[0]}, s{sGA}, 7")
        a(f"s_add_u32 s{T[3]}, s{T[3]}, s{T[0]}")

        def dma_a(qq):
            for t in range(2):
                a(f"s_add_u32 m0, s{sW2K}, {LDS_A + qq*8192 + t*1024}")
                a(f"s_add_u32 s{T[0]}, s{T[3]}, {qq*2560 + t*61440}")
                a.vmem(f"buffer_load_dwordx4 v{vA}, {srd(S_MOD)}, s{T[0]} offen lds", ("A", qq))
        dma_a(0)
        a(f"s_lshr_b32 s{T[4]}, s{sGB}, 3")
        a(f"s_and_b32 s{T[5]}, s{sGB}, 7")
        a(f"s_mul_i32 s{T[0]}, s{sKB}, {64*3840}")
        a(f"s_mul_i32 s{T[1]}, s{T[4]}, 1280")
        a(f"s_add_u32 s{T[0]}, s{T[0]}, s{T[1]}")
        a(f"s_mul_i32 s{T[1]}, s{T[5]}, 160")
        a(f"s_add_u32 s{T[0]}, s{T[0]}, s{T[1]}")
        a(f"s_lshl_b32 s{T[6]}, s{sW}, 10")
        for t in range(3):
            a(f"v_add_u32 v{vT+4}, {256*t}, v0")
            self.divmod_v(vT + 5, vT + 6, vT + 4, 10)
            a(f"v_mul_u32_u24 v{vB0}, 3840, v{vT+5}")
            a(f"v_lshl_add_u32 v{vB0}, v{vT+6}, 4, v{vB0}")
            if t == 2:
                a(f"v_mov_b32 v{vT+6}, {OOB}")
                a(f"v_cmp_gt_u32 vcc, 64, v{vT+5}")
                a(f"v_cndmask_b32 v{vB0}, v{vT+6}, v{vB0}, vcc")
            a(f"s_add_u32 m0, s{T[6]}, {LDS_B + t*4096}")
            a("s_nop 0")
            a.vmem(f"buffer_load_dwordx4 v{vB0}, {srd(S_WQ)}, s{T[0]} offen lds", "B")
        a(f"v_lshrrev_b32 v{vT+4}, 5, v0")
        a(f"v_and_b32 v{vT+5}, 31, v0")
        a(f"v_mul_u32_u24 v{vC}, 1280, v{vT+4}")
        a(f"v_lshl_add_u32 v{vC}, v{vT+5}, 4, v{vC}")
        a(f"s_mul_i32 s{T[0]}, s{sL}, {8*1280}")
        a.vmem(f"buffer_load_dwordx4 {q(vX)}, v{vC}, {srd(S_X)}, s{T[0]} offen", "C")
        a.vmem(f"buffer_load_dwordx4 {q(vX+4)}, v{vC}, {srd(S_X)}, s{T[0]} offen offset:512", "C")
        a(f"v_mov_b32 v{vT+6}, {OOB}")
        a(f"v_cmp_gt_u32 vcc, 16, v{vT+5}")
        a(f"v_cndmask_b32 v{vT+6}, v{vT+6}, v{vC}, vcc")
        a.vmem(f"buffer_load_dwordx4 {q(vX+8)}, v{vT+6}, {srd(S_X)}, s{T[0]} offen offset:1024", "C")
        a(f"s_getpc_b64 s[{T[7]+1}:{T[7]+2}]" if (T[7] + 1) % 2 == 0 else f"s_getpc_b64 s[{T[7]}:{T[7]+1}]")
        pc = T[7] + 1 if (T[7] + 1) % 2 == 0 else T[7]
        a(f"s_lshr_b32 s{T[0]}, s2, 3")
        a(f"s_and_b32 s{T[0]}, s{T[0]}, 3")
        a(f"s_lshl_b32 s{T[0]}, s{T[0]}, 13")
        a(f"v_lshlrev_b32 v{vT+6}, 5, v0")
        a(f"v_add_u32 v{vT+6}, s{T[0]}, v{vT+6}")
        a.vmem(f"global_load_dword v254, v{vT+6}, s[{pc}:{pc+1}]", "code")
        dma_a(1)
        dma_a(2)
        a(f"s_lshl_b32 s{T[0]}, s{sW}, 3")
        a(f"v_add_u32 v{vT+4}, s{T[0]}, v{vT+2}")
        a(f"v_mul_lo_u32 v{vD}, v{vT+4}, s{sPitch}")
        a(f"v_add_u32 v{vD}, v{vD}, v{vT+3}")
        a(f"s_mul_i32 s{T[0]}, s{sK4}, 160")
        a(f"s_mul_i32 s{T[0]}, s{T[0]}, s{sPitch}")
        a(f"s_lshl_b32 s{T[1]}, s{sCB}, 7")
        a(f"s_add_u32 s{T[0]}, s{T[0]}, s{T[1]}")
        a(f"s_lshl_b32 s{T[1]}, s{sPitch}, 5")
        for t in range(5):
            a(f"s_add_u32 m0, s{T[6]}, {LDS_D + t*4096}")
            a("s_nop 0")
            a.vmem(f"buffer_load_dwordx4 v{vD}, {srd(S_D1)}, s{T[0]} offen lds", "D1")
            if t < 4:
                a(f"s_add_u32 s{T[0]}, s{T[0]}, s{T[1]}")
        a(f"v_mul_u32_u24 v{vD}, 1280, v{vT+4}")
        a(f"v_add_u32 v{vD}, v{vD}, v{vT+3}")
        a(f"s_mul_i32 s{T[0]}, s{sK18}, {96*1280}")
        a(f"s_lshl_b32 s{T[1]}, s{sCD}, 7")
        a(f"s_add_u32 s{T[0]}, s{T[0]}, s{T[1]}")
        for t in range(3):
            a(f"s_add_u32 m0, s{T[6]}, {LDS_D2 + t*4096}")
            a(f"s_add_u32 s{T[1]}, s{T[0]}, {t*32*1280}")
            a.vmem(f"buffer_load_dwordx4 v{vD}, {srd(S_D2)}, s{T[1]} offen lds", "D2")
        a(f"v_mul_u32_u24 v{vT+4}, 1280, v{vM}")
        a(f"v_lshl_add_u32 v{vT+5}, v{vG}, 4, v{vT+4}")
        a(f"v_and_b32 v{vT+6}, 1, v{vG}")
        a(f"v_lshl_add_u32 v{vT+4}, v{vT+6}, 4, v{vT+4}")
        a(f"v_lshrrev_b32 v{vT+6}, 1, v{vG}")
        a(f"v_lshl_add_u32 v{vT+4}, v{vT+6}, 3, v{vT+4}")
        a(f"s_mul_i32 s{T[0]}, s{sMT1}, {16*1280}")
        a(f"s_mul_i32 s{T[1]}, s{sCS}, 160")
        a(f"s_add_u32 s{T[0]}, s{T[0]}, s{T[1]}")
        a.vmem(f"buffer_load_dwordx4 {q(vXr)}, v{vT+5}, {srd(S_X)}, s{T[0]} offen", "xr")
        a.vmem(f"buffer_load_dwordx4 {q(vXr+4)}, v{vT+5}, {srd(S_X)}, s{T[0]} offen offset:64", "xr")
        a.vmem(f"buffer_load_dwordx2 {q(vXr+8,2)}, v{vT+4}, {srd(S_X)}, s{T[0]} offen offset:128", "xr")
        a(f"v_bfe_u32 v{vR}, v{vLane}, 2, 2")
        a(f"v_and_b32 v{vCc}, 3, v{vLane}")
        a(f"v_lshl_add_u32 v{vTr}, v{vG}, 3, v{vR}")

        a.wait_vm("c")
        a(f"v_lshlrev_b32 v{vT+1}, 16, v{vT+1}")
        a(f"v_mul_f32 v{vT+2}, 0xbfb8aa3b, v{vT+1}")
        a(f"v_exp_f32 v{vT+2}, v{vT+2}")
        a(f"v_add_f32 v{vT+2}, 1.0, v{vT+2}")
        a(f"v_rcp_f32 v{vT+2}, v{vT+2}")
        a(f"v_mul_f32 v{vT+1}, v{vT+1}, v{vT+2}")
        a(f"v_cvt_pk_bf16_f32 v{vT+1}, v{vT+1}, v{vT+1}")
        a(f"v_lshlrev_b32 v{vT+2}, 1, v0")
        a(f"v_add_u32 v{vT+2}, {T_S}, v{vT+2}")
        a(f"ds_write_b16 v{vT+2}, v{vT+1}")
        a(f"s_lshl_b32 s{T[0]}, s{sW}, 7")
        a(f"s_add_u32 s{T[0]}, s{T[0]}, {T_S}")
        a(f"v_lshlrev_b32 v{vT+2}, 4, v{vG}")
        a(f"v_add_u32 v{vT+2}, s{T[0]}, v{vT+2}")
        vS = 224
        a("s_waitcnt lgkmcnt(0)")
        a(f"ds_read_b128 {q(vS)}, v{vT+2}")
        a(f"ds_read_b128 {q(vS+4)}, v{vT+2} offset:64")
        a(f"s_add_u32 s{sN}, s{sN}, 0x9e3779b1")
        a(f"v_mov_b32 v{vNonce}, s{sN}")
        vTrA, vStA = 232, 233
        a(f"v_lshlrev_b32 v{vTrA}, 7, v{vTr}")
        a(f"v_lshl_add_u32 v{vTrA}, v{vCc}, 3, v{vTrA}")
        a(f"s_lshl_b32 s{T[0]}, s{sW}, 5")
        a(f"v_add_u32 v{vTrA}, s{T[0]}, v{vTrA}")
        a(f"v_lshlrev_b32 v{vStA}, 5, v{vG}")
        a(f"v_lshl_add_u32 v{vStA}, v{vM}, 4, v{vStA}")
        a(f"s_lshl_b32 s{T[0]}, s{sW}, 7")
        a(f"v_add_u32 v{vStA}, s{T[0]}, v{vStA}")
        a(f"v_mov_b32 v{vT+3}, {OOB}")
        a(f"v_cmp_gt_u32 vcc, 2, v{vM}")
        a(f"v_cndmask_b32 v{vStA}, v{vT+3}, v{vStA}, vcc")

        def task_a(qq):
            f, acc = vT + 8, vT + 16
            for st in range(2):
                for h in range(2):
                    a(f"ds_read_b64_tr_b16 {q(f+4*st+2*h,2)}, v{vTrA} offset:{LDS_A + qq*8192 + st*4096 + h*512}")
            a("s_waitcnt lgkmcnt(0)")
            a(f"v_mfma_f32_16x16x32_bf16 {q(acc)}, {q(f)}, {q(vS)}, 0")
            a(f"v_mfma_f32_16x16x32_bf16 {q(acc)}, {q(f+4)}, {q(vS+4)}, {q(acc)}")
            a(f"s_mul_i32 s{T[0]}, s{sGA}, 5120")
            a(f"s_lshl_b32 s{T[1]}, s{sKA}, 9")
            a(f"s_add_u32 s{T[0]}, s{T[0]}, s{T[1]}")
            a(f"s_add_u32 s{T[0]}, s{T[0]}, {MODP + qq*20*5120}")
            a(f"v_cmp_eq_u32 vcc, 0, v{vM}")
            o = vT + 20 + 4 * qq
            a(f"v_mov_b32 v{o+1}, s{sN}")
            a(f"v_mov_b32 v{o+3}, s{sN}")
            a(f"v_cndmask_b32 v{o}, v{acc+2}, v{acc}, vcc")
            a(f"v_cndmask_b32 v{o+2}, v{acc+3}, v{acc+1}, vcc")
            a.vmem(f"buffer_store_dwordx4 {q(o)}, v{vStA}, {srd(S_WSA)}, s{T[0]} offen sc1", "stA")
        a.wait_vm(("A", 0))
        a("s_waitcnt lgkmcnt(0)")
        a("s_barrier")
        task_a(0)
        self.stamp()

        a.wait_vm("C")
        s1, s2, one = vT, vT + 1, vT + 2
        a(f"v_mov_b32 v{one}, 0x3f803f80")
        a(f"v_mov_b32 v{s1}, 0")
        a(f"v_mov_b32 v{s2}, 0")
        u = 128
        for d in range(12):
            a(f"v_lshlrev_b32 v{u+2*d}, 16, v{vX+d}")
            a(f"v_and_b32 v{u+2*d+1}, 0xffff0000, v{vX+d}")
        for d in range(24):
            a(f"v_add_f32 v{s1}, v{s1}, v{u+d}")
            a(f"v_fmac_f32 v{s2}, v{u+d}, v{u+d}")
        for sh in (8, 4, 2, 1):
            a(f"v_add_f32_dpp v{s1}, v{s1}, v{s1} row_ror:{sh} row_mask:0xf bank_mask:0xf")
            a(f"v_add_f32_dpp v{s2}, v{s2}, v{s2} row_ror:{sh} row_mask:0xf bank_mask:0xf")
        a(f"v_mov_b32 v{vT+3}, v{s1}")
        a(f"v_mov_b32 v{vT+4}, v{s2}")
        a(f"v_permlane16_swap_b32 v{s1}, v{vT+3}")
        a(f"v_permlane16_swap_b32 v{s2}, v{vT+4}")
        a(f"v_add_f32 v{s1}, v{s1}, v{vT+3}")
        a(f"v_add_f32 v{s2}, v{s2}, v{vT+4}")
        self.ln_finish(s1, s2, vT + 3)
        for d in range(24):
            a(f"v_fma_f32 v{u+d}, v{u+d}, v{s2}, v{s1}")
        for d in range(12):
            a(f"v_cvt_pk_bf16_f32 v{vX+d}, v{u+2*d}, v{u+2*d+1}")
        a(f"v_and_b32 v{vT+5}, 31, v0")
        a(f"v_lshrrev_b32 v{vT+4}, 5, v0")
        a(f"v_mul_u32_u24 v{vT+6}, 144, v{vT+5}")
        a(f"v_lshl_add_u32 v{vT+6}, v{vT+4}, 4, v{vT+6}")
        a(f"ds_write_b128 v{vT+6}, {q(vX)} offset:{LDS_C}")
        a(f"ds_write_b128 v{vT+6}, {q(vX+4)} offset:{LDS_C + 32*144}")
        a(f"v_cmp_gt_u32 vcc, 16, v{vT+5}")
        a(f"s_and_saveexec_b64 s[{pc}:{pc+1}], vcc")
        a(f"ds_write_b128 v{vT+6}, {q(vX+8)} offset:{LDS_C + 64*144}")
        a(f"s_mov_b64 exec, -1")
        a(f"v_lshrrev_b32 v{vT+4}, 3, v0")
        a(f"v_and_b32 v{vT+5}, 7, v0")
        a(f"v_mul_u32_u24 v{vT+6}, 144, v{vT+4}")
        a(f"v_lshl_add_u32 v{vT+6}, v{vT+5}, 4, v{vT+6}")
        a(f"v_lshlrev_b32 v{vT+7}, 8, v{vT+4}")
        a(f"v_lshl_add_u32 v{vT+7}, v{vT+5}, 4, v{vT+7}")
        a(f"v_mov_b32 v{vT+8}, {OOB}")
        a(f"v_cmp_gt_u32 vcc, 16, v{vT+4}")
        a(f"v_cndmask_b32 v{vT+8}, v{vT+8}, v{vT+7}, vcc")
        a(f"s_lshr_b32 s{T[0]}, s{sL}, 1")
        a(f"s_mul_i32 s{T[0]}, s{T[0]}, 20480")
        a(f"s_and_b32 s{T[1]}, s{sL}, 1")
        a(f"s_lshl_b32 s{T[1]}, s{T[1]}, 7")
        a(f"s_add_u32 s{T[0]}, s{T[0]}, s{T[1]}")
        a.wait_vm("B")
        a("s_waitcnt lgkmcnt(0)")
        a("s_barrier")
        for t in range(3):
            a(f"ds_read_b128 {q(vX+4*t)}, v{vT+6} offset:{LDS_C + 32*144*t}")
        a("s_waitcnt lgkmcnt(0)")
        for t in range(3):
            a(f"s_add_u32 s{T[1]}, s{T[0]}, {XH + t*8192}")
            a.vmem(f"buffer_store_dwordx4 {q(vX+4*t)}, v{vT+7 if t < 2 else vT+8}, {srd(S_WS)}, s{T[1]} offen sc1", "stC")
        self.stamp()

        a(f"s_and_b32 s{T[2]}, s{sW}, 1")
        a(f"s_mul_i32 s{T[2]}, s{T[2]}, 10")
        a(f"s_add_u32 s{T[2]}, s{T[2]}, s{sKB}")
        a(f"s_mul_i32 s{T[2]}, s{T[2]}, 5120")
        a(f"v_lshlrev_b32 v{vT}, 3, v{vLane}")
        a(f"v_add_u32 v{vT}, s{T[2]}, v{vT}")
        fm, fl = 128, 136
        a(f"v_mul_u32_u24 v{vT+2}, 160, v{vTr}")
        a(f"s_mul_i32 s{T[0]}, s{sW}, 40")
        a(f"v_lshl_add_u32 v{vT+3}, v{vCc}, 3, v{vT+2}")
        a(f"v_add_u32 v{vT+3}, s{T[0]}, v{vT+3}")
        a(f"v_mad_u32_u24 v{vT+4}, v{vCc}, 40, v{vT+2}")
        for st in range(2):
            for h in range(2):
                a(f"ds_read_b64_tr_b16 {q(fm+4*st+2*h,2)}, v{vT+3} offset:{LDS_B + (32*st+4*h)*160}")
                a(f"ds_read_b64_tr_b16 {q(fl+4*st+2*h,2)}, v{vT+4} offset:{LDS_B + (32*st+4*h)*160 + 32}")
        self.gather_mod([vT], 160, [vT + 1])
        a("s_barrier")
        a(f"s_mov_b32 s{T[0]}, {FLAG + EV_XH*0x8000}")
        a.vmem(f"buffer_store_dword v{vNonce}, v{vFlag}, {srd(S_WS)}, s{T[0]} offen sc1", "flag")
        self.stamp()
        a(f"v_cvt_pk_bf16_f32 v{vT+1}, v{vT+1}, v{vT+1}")
        a(f"v_lshlrev_b32 v{vT+2}, 1, v0")
        a(f"v_add_u32 v{vT+2}, {T_16B}, v{vT+2}")
        a(f"ds_write_b16 v{vT+2}, v{vT+1}")
        a(f"v_and_b32 v{vT+1}, 0xffff0000, v{vT+1}")
        a(f"v_add_f32 v{vT+1}, 1.0, v{vT+1}")
        a(f"v_cvt_pk_bf16_f32 v{vT+1}, v{vT+1}, v{vT+1}")
        a(f"v_and_b32 v{vT+1}, 0xffff0000, v{vT+1}")
        a(f"v_lshlrev_b32 v{vT+2}, 2, v0")
        a(f"v_add_u32 v{vT+2}, {T_32B}, v{vT+2}")
        a(f"ds_write_b32 v{vT+2}, v{vT+1}")
        a(f"v_lshlrev_b32 v{vT+2}, 4, v{vG}")
        a(f"v_add_u32 v{vT+2}, {T_16B}, v{vT+2}")
        a(f"v_lshlrev_b32 v{vT+3}, 5, v{vG}")
        a(f"v_add_u32 v{vT+3}, {T_32B + 256}, v{vT+3}")
        a("s_waitcnt lgkmcnt(0)")
        a("s_barrier")
        sa, sc = 144, 152
        for st in range(2):
            a(f"ds_read_b128 {q(sa+4*st)}, v{vT+2} offset:{64*st}")
            a(f"ds_read_b128 {q(sc+8*st)}, v{vT+3} offset:{128*st}")
            a(f"ds_read_b128 {q(sc+8*st+4)}, v{vT+3} offset:{128*st+16}")
        a(f"s_lshr_b32 s{T[4]}, s{sGB}, 3")
        a(f"s_and_b32 s{T[5]}, s{sGB}, 7")
        a(f"s_lshl_b32 s{T[5]}, s{T[5]}, 1")
        a(f"s_lshl_b32 s{T[0]}, s{T[4]}, 2")
        a(f"s_lshr_b32 s{T[0]}, 0x402, s{T[0]}")
        a(f"s_and_b32 s{T[0]}, s{T[0]}, 15")
        a(f"s_and_b32 s{T[1]}, s{sW}, 1")
        a(f"s_add_u32 s{T[0]}, s{T[0]}, s{T[1]}")
        a(f"s_lshr_b32 s{T[1]}, s{sW}, 1")
        a(f"s_add_u32 s{T[1]}, s{T[1]}, s{T[5]}")
        a(f"s_cmp_eq_u32 s{T[4]}, 2")
        a(f"s_cselect_b32 s{T[2]}, 7, 6")
        a(f"s_cmp_eq_u32 s{T[4]}, 0")
        a(f"s_cselect_b32 s{T[3]}, 8, 0")
        a(f"s_mul_i32 s{T[6]}, s{T[1]}, {160*1024}")
        a(f"s_lshl_b32 s{T[7]}, s{T[0]}, 10")
        a(f"s_add_u32 s{T[6]}, s{T[6]}, s{T[7]}")
        a(f"s_lshl_b32 s{T[8]}, s{sKB}, 14")
        a(f"s_add_u32 s{T[8]}, s{T[8]}, {WQ}")
        a(f"s_add_u32 s{T[6]}, s{T[6]}, s{T[8]}")
        a(f"s_mul_i32 s{T[7]}, s{T[5]}, {160*1024}")
        a(f"s_add_u32 s{T[8]}, s{T[8]}, s{T[7]}")
        a(f"s_lshl_b32 s{T[7]}, s{T[2]}, 10")
        a(f"s_add_u32 s{T[8]}, s{T[8]}, s{T[7]}")
        a(f"s_lshl_b32 s{T[7]}, s{T[3]}, 4")
        a(f"s_add_u32 s{T[8]}, s{T[8]}, s{T[7]}")
        a(f"v_lshrrev_b32 v{vT+4}, 3, v{vM}")
        a(f"v_mul_u32_u24 v{vT+4}, {160*1024 - 128}, v{vT+4}")
        a(f"v_add_u32 v{vT+4}, v{vT+4}, v{vL16}")
        a(f"v_mov_b32 v{vT+5}, {OOB}")
        a(f"v_cmp_gt_u32 vcc, 64, v0")
        a(f"v_cndmask_b32 v{vT+4}, v{vT+5}, v{vT+4}, vcc")
        a(f"s_mul_i32 s{T[1]}, s{T[1]}, 5120")
        a(f"s_lshl_b32 s{T[0]}, s{T[0]}, 6")
        a(f"s_add_u32 s{T[1]}, s{T[1]}, s{T[0]}")
        a(f"s_lshl_b32 s{T[0]}, s{sKB}, 9")
        a(f"s_add_u32 s{T[0]}, s{T[0]}, {V1P}")
        a(f"s_add_u32 s{T[1]}, s{T[1]}, s{T[0]}")
        a(f"s_mul_i32 s{T[5]}, s{T[5]}, 5120")
        a(f"s_add_u32 s{T[0]}, s{T[0]}, s{T[5]}")
        a(f"s_lshl_b32 s{T[2]}, s{T[2]}, 6")
        a(f"s_add_u32 s{T[0]}, s{T[0]}, s{T[2]}")
        a(f"s_lshl_b32 s{T[3]}, s{T[3]}, 2")
        a(f"s_add_u32 s{T[0]}, s{T[0]}, s{T[3]}")
        a(f"v_lshlrev_b32 v{vT+6}, 4, v{vG}")
        a(f"v_lshrrev_b32 v{vT+7}, 1, v{vG}")
        a(f"v_mul_u32_u24 v{vT+7}, {5120 - 32}, v{vT+7}")
        a(f"v_add_u32 v{vT+7}, v{vT+7}, v{vT+6}")
        a(f"v_cndmask_b32 v{vT+7}, v{vT+5}, v{vT+7}, vcc")
        a(f"v_cmp_eq_u32 vcc, 0, v{vM}")
        a(f"v_cndmask_b32 v{vT+6}, v{vT+5}, v{vT+6}, vcc")
        a(f"v_cndmask_b32 v{vT+7}, v{vT+5}, v{vT+7}, vcc")
        a("s_waitcnt lgkmcnt(0)")
        pm, pl, o = 168, 172, 176
        a(f"v_mfma_f32_16x16x32_bf16 {q(pm)}, {q(fm)}, {q(sa)}, 0")
        a(f"v_mfma_f32_16x16x32_bf16 {q(pl)}, {q(fl)}, {q(sa)}, 0")
        a(f"v_mfma_f32_16x16x32_bf16 {q(pm)}, {q(fm+4)}, {q(sa+4)}, {q(pm)}")
        a(f"v_mfma_f32_16x16x32_bf16 {q(pl)}, {q(fl+4)}, {q(sa+4)}, {q(pl)}")
        for st in range(2):
            self.scale_frag(o + 8 * st, fm + 4 * st, sc + 8 * st, vT + 8)
            a.vmem(f"buffer_store_dwordx4 {q(o+8*st)}, v{vL16}, {srd(S_WSB)}, s{T[6]} offen sc1", "stB")
            a(f"s_add_u32 s{T[6]}, s{T[6]}, 8192")
        for st in range(2):
            self.scale_frag(o + 8 * st + 4, fl + 4 * st, sc + 8 * st, vT + 8)
            a.vmem(f"buffer_store_dwordx4 {q(o+8*st+4)}, v{vT+4}, {srd(S_WSB)}, s{T[8]} offen sc1", "stB")
            a(f"s_add_u32 s{T[8]}, s{T[8]}, 8192")
        a.vmem(f"buffer_store_dwordx4 {q(pm)}, v{vT+6}, {srd(S_WSB)}, s{T[1]} offen sc1", "stB")
        a.vmem(f"buffer_store_dwordx4 {q(pl)}, v{vT+7}, {srd(S_WSB)}, s{T[0]} offen sc1", "stB")
        task_a(1)
        task_a(2)
        self.publish(EV_WQ, "stB")
        self.stamp()

        vPerm, vSt = 234, 235
        a(f"v_and_b32 v{vT}, 1, v{vCc}")
        a(f"v_lshrrev_b32 v{vT+1}, 1, v{vCc}")
        a(f"v_lshl_add_u32 v{vPerm}, v{vT}, 1, v{vT+1}")
        a(f"v_lshlrev_b32 v{vPerm}, 3, v{vPerm}")
        a(f"s_lshl_b32 s{T[0]}, s{sW}, 5")
        a(f"v_add_u32 v{vPerm}, s{T[0]}, v{vPerm}")
        vGa, vGb = 236, 237
        a(f"v_and_b32 v{vGa}, 1, v{vG}")
        a(f"v_lshrrev_b32 v{vGb}, 1, v{vG}")

        def out_tile_dest(scb, region, per, dbase, dhi):
            a(f"s_lshl_b32 s{T[0]}, s{scb}, 2")
            a(f"s_add_u32 s{T[0]}, s{T[0]}, s{sW}")
            self.divmod_s(T[1], T[2], T[0], 5)
            a(f"s_mul_i32 s{dbase}, s{T[1]}, {per*1024}")
            a(f"s_add_u32 s{dbase}, s{dbase}, {region}")
            a(f"s_lshr_b32 s{T[0]}, s{T[2]}, 1")
            a(f"s_lshl_b32 s{T[0]}, s{T[0]}, 11")
            a(f"s_add_u32 s{dbase}, s{dbase}, s{T[0]}")
            a(f"s_and_b32 s{T[0]}, s{T[2]}, 1")
            a(f"s_lshl_b32 s{T[0]}, s{T[0]}, 7")
            a(f"s_add_u32 s{dbase}, s{dbase}, s{T[0]}")
            a(f"s_cmp_eq_u32 s{T[2]}, 4")
            a(f"s_cselect_b32 s{dhi}, 0, {1024-128}")

        def lane_store_off(dhi):
            a(f"v_lshrrev_b32 v{vSt}, 3, v{vM}")
            a(f"v_mul_lo_u32 v{vSt}, v{vSt}, s{dhi}")
            a(f"v_add_u32 v{vSt}, v{vSt}, v{vL16}")
        out_tile_dest(sCD, WDP, 272, T[5], T[6])
        lane_store_off(T[6])
        a(f"s_mul_i32 s{T[0]}, s{sK18}, {15*1024}")
        a(f"s_add_u32 s{T[5]}, s{T[5]}, s{T[0]}")
        a(f"v_lshl_add_u32 v{vT}, v{vGa}, 3, v{vR}")
        a(f"v_lshl_add_u32 v{vT}, v{vGb}, 2, v{vT}")
        a(f"s_cmp_lt_u32 s{sK18}, 16")
        a(f"s_cselect_b64 vcc, -1, 0")
        a(f"s_mov_b32 s{T[0]}, 512")
        a(f"s_cselect_b32 s{T[0]}, 2048, s{T[0]}")
        a(f"v_cndmask_b32 v{vT}, v{vTr}, v{vT}, vcc")
        a(f"v_lshl_add_u32 v{vT}, v{vT}, 7, v{vPerm}")
        a(f"v_add_u32 v{vT}, {LDS_D2}, v{vT}")
        a(f"v_add_u32 v{vT+1}, s{T[0]}, v{vT}")
        f = 128
        for sl in range(3):
            a(f"ds_read_b64_tr_b16 {q(f+4*sl,2)}, v{vT} offset:{sl*4096}")
            a(f"ds_read_b64_tr_b16 {q(f+4*sl+2,2)}, v{vT+1} offset:{sl*4096}")
        a("s_waitcnt lgkmcnt(0)")
        for sl in range(3):
            a.vmem(f"buffer_store_dwordx4 {q(f+4*sl)}, v{vSt}, {srd(S_WSD)}, s{T[5]} offen sc1", "stD")
            a(f"s_add_u32 s{T[5]}, s{T[5]}, 5120")

        a(f"s_mul_i32 s{T[2]}, s{sK4}, 160")
        a(f"s_mul_i32 s{T[3]}, s{sCS}, 80")
        a(f"s_sub_u32 s{T[3]}, s{T[3]}, 160")
        a(f"v_min_u32 v{vT}, 239, v0")
        a(f"v_cmp_gt_u32 vcc, 160, v{vT}")
        for i, (lo, hi) in enumerate(((2560, 1280), (1920, 3200))):
            a(f"s_add_u32 s{T[0]}, s{T[2]}, {lo}")
            a(f"s_add_u32 s{T[1]}, s{T[3]}, {hi}")
            a(f"v_mov_b32 v{vT+1}, s{T[0]}")
            a(f"v_mov_b32 v{vT+2}, s{T[1]}")
            a(f"v_cndmask_b32 v{vT+1}, v{vT+2}, v{vT+1}, vcc")
            a(f"v_add_u32 v{vT+1}, v{vT+1}, v{vT}")
            a(f"v_lshrrev_b32 v{vT+2}, 6, v{vT+1}")
            a(f"v_and_b32 v{vT+1}, 63, v{vT+1}")
            a(f"v_mul_u32_u24 v{vT+2}, 5120, v{vT+2}")
            a(f"v_lshl_add_u32 v{vT+4+i}, v{vT+1}, 3, v{vT+2}")
        self.gather_mod([vT + 4, vT + 5], 140, [vT + 6, vT + 7])
        a(f"v_cvt_pk_bf16_f32 v{vT+6}, v{vT+6}, v{vT+6}")
        a(f"v_cvt_pk_bf16_f32 v{vT+7}, v{vT+7}, v{vT+7}")
        a(f"v_lshlrev_b32 v{vT+2}, 1, v0")
        a(f"v_add_u32 v{vT+2}, {T_SB}, v{vT+2}")
        a(f"ds_write_b16 v{vT+2}, v{vT+7}")
        a(f"v_and_b32 v{vT+6}, 0xffff0000, v{vT+6}")
        a(f"v_and_b32 v{vT+7}, 0xffff0000, v{vT+7}")
        a(f"v_add_f32 v{vT+3}, 1.0, v{vT+6}")
        a(f"v_cvt_pk_bf16_f32 v{vT+3}, v{vT+3}, v{vT+3}")
        a(f"v_and_b32 v{vT+3}, 0xffff0000, v{vT+3}")
        a(f"s_cmp_lt_u32 s{sL}, 216")
        a(f"s_cselect_b64 vcc, -1, 0")
        a(f"v_cndmask_b32 v{vT+3}, 1.0, v{vT+3}, vcc")
        a(f"v_cmp_gt_u32 vcc, 160, v0")
        a(f"v_cndmask_b32 v{vT+6}, v{vT+6}, v{vT+3}, vcc")
        a(f"v_lshlrev_b32 v{vT+2}, 2, v0")
        a(f"v_add_u32 v{vT+2}, {T_GA}, v{vT+2}")
        a(f"ds_write_b32 v{vT+2}, v{vT+6}")
        a(f"ds_write_b32 v{vT+2}, v{vT+7} offset:1024")
        a(f"s_cmp_lt_u32 s{sL}, 216")
        a(f"s_cselect_b64 vcc, -1, 0")
        a(f"s_mov_b32 s{T[3]}, {20*128}")
        a(f"s_cselect_b32 s{T[3]}, {4*128}, s{T[3]}")
        a(f"s_mov_b32 s{T[4]}, {40*128}")
        a(f"s_cselect_b32 s{T[4]}, {32*128}, s{T[4]}")
        a(f"v_lshl_add_u32 v{vT}, v{vG}, 2, v{vR}")
        a(f"v_cndmask_b32 v{vT}, v{vT}, v{vTr}, vcc")
        a(f"v_mul_u32_u24 v{vT+8}, 80, v{vGb}")
        a(f"v_lshl_add_u32 v{vT+8}, v{vGa}, 3, v{vT+8}")
        a(f"v_add_u32 v{vT+8}, 64, v{vT+8}")
        a(f"v_mad_u32_u24 v{vT+1}, v{vG}, 40, 16")
        a(f"v_cndmask_b32 v{vT+1}, v{vT+1}, v{vT+8}, vcc")
        a(f"v_add_u32 v{vT+1}, v{vT+1}, v{vR}")
        a(f"v_lshl_add_u32 v{vT}, v{vT}, 7, v{vPerm}")
        a(f"v_lshl_add_u32 v{vT+1}, v{vT+1}, 7, v{vPerm}")
        a(f"v_add_u32 v{vT+2}, s{T[4]}, v{vT}")
        for k in range(3):
            a(f"v_add_u32 v{vT+3+k}, s{T[3]}, v{vT+k}")
        f = 128
        for ksl in range(5):
            b = (vT, vT + 2, vT, vT + 2, vT + 1)[ksl]
            off = LDS_D + (80 * 128 if ksl in (2, 3) else 0)
            a(f"ds_read_b64_tr_b16 {q(f+4*ksl,2)}, v{b} offset:{off}")
            a(f"ds_read_b64_tr_b16 {q(f+4*ksl+2,2)}, v{b+3} offset:{off}")
        out_tile_dest(sCB, WOP, 104, T[5], T[6])
        a(f"s_mov_b32 s{T[7]}, 5120")
        lab = a.label("wo")
        a(f"s_mov_b32 s{T[8]}, {OOB}")
        a(f"s_cmp_ge_u32 s{sL}, 216")
        a(f"s_cbranch_scc1 {lab}")
        a(f"s_lshl_b32 s{T[0]}, s{sCB}, 2")
        a(f"s_add_u32 s{T[0]}, s{T[0]}, s{sW}")
        a(f"s_sub_u32 s{T[1]}, s{T[0]}, 96")
        a(f"s_cmp_ge_u32 s{T[0]}, 102")
        a(f"s_cselect_b32 s{T[2]}, 2, 0")
        a(f"s_add_u32 s{T[1]}, s{T[1]}, s{T[2]}")
        a(f"s_mov_b32 s{T[2]}, 6")
        a(f"s_sub_u32 s{T[3]}, s{T[0]}, 64")
        a(f"s_lshr_b32 s{T[3]}, s{T[3]}, 1")
        a(f"s_and_b32 s{T[4]}, s{T[0]}, 1")
        a(f"s_add_u32 s{T[4]}, s{T[4]}, 4")
        a(f"s_cmp_lt_u32 s{T[0]}, 96")
        a(f"s_cselect_b32 s{T[1]}, s{T[3]}, s{T[1]}")
        a(f"s_cselect_b32 s{T[2]}, s{T[4]}, s{T[2]}")
        a(f"s_cmp_lt_u32 s{T[0]}, 64")
        a(f"s_cselect_b32 s{T[1]}, s{sCB}, s{T[1]}")
        a(f"s_cselect_b32 s{T[2]}, s{sW}, s{T[2]}")
        a(f"s_mov_b32 s{T[7]}, 6144")
        a(f"s_cselect_b32 s{T[7]}, 8192, s{T[7]}")
        a(f"s_cselect_b32 s{T[3]}, 0, {152*1024}")
        a(f"s_lshl_b32 s{T[2]}, s{T[2]}, 1")
        a(f"s_add_u32 s{T[2]}, s{T[2]}, s25")
        a(f"s_mul_i32 s{T[5]}, s{T[1]}, {280*1024}")
        a(f"s_add_u32 s{T[5]}, s{T[5]}, s{T[3]}")
        a(f"s_lshl_b32 s{T[3]}, s{T[2]}, 10")
        a(f"s_add_u32 s{T[5]}, s{T[5]}, s{T[3]}")
        a(f"s_add_u32 s{T[5]}, s{T[5]}, {WGU}")
        a(f"s_mov_b32 s{T[6]}, 0")
        a(f"s_lshl_b32 s{T[8]}, s{T[1]}, 2")
        a(f"s_add_u32 s{T[8]}, s{T[8]}, s{sK4}")
        a(f"s_mul_i32 s{T[8]}, s{T[8]}, 1792")
        a(f"s_lshl_b32 s{T[3]}, s{T[2]}, 6")
        a(f"s_add_u32 s{T[8]}, s{T[8]}, s{T[3]}")
        a(f"s_add_u32 s{T[8]}, s{T[8]}, {UV2P}")
        a(f"{lab}:")
        lane_store_off(T[6])
        a(f"s_add_u32 s{T[0]}, s{sK4}, 16")
        a(f"s_mul_i32 s{T[0]}, s{T[0]}, s{T[7]}")
        a(f"s_add_u32 s{T[9]}, s{T[5]}, s{T[0]}")
        a(f"s_lshl_b32 s{T[0]}, s{sK4}, 2")
        a(f"s_mul_i32 s{T[0]}, s{T[0]}, s{T[7]}")
        a(f"s_add_u32 s{T[5]}, s{T[5]}, s{T[0]}")
        a(f"v_lshlrev_b32 v{vT}, 5, v{vG}")
        a(f"v_add_u32 v{vT}, {T_GA}, v{vT}")
        a(f"v_lshlrev_b32 v{vT+1}, 2, v{vT+8}")
        a(f"v_add_u32 v{vT+1}, {T_GA}, v{vT+1}")
        a(f"v_lshlrev_b32 v{vT+2}, 4, v{vG}")
        a(f"v_add_u32 v{vT+2}, {T_SB}, v{vT+2}")
        a(f"v_lshlrev_b32 v{vT+3}, 1, v{vT+8}")
        a(f"v_add_u32 v{vT+3}, {T_SB}, v{vT+3}")
        a(f"v_lshlrev_b32 v{vT+4}, 4, v{vG}")
        a(f"v_mov_b32 v{vT+5}, {OOB}")
        a(f"v_cmp_eq_u32 vcc, 0, v{vM}")
        a(f"v_cndmask_b32 v{vT+4}, v{vT+5}, v{vT+4}, vcc")
        a("s_waitcnt lgkmcnt(0)")
        a("s_barrier")
        sb, sc, o, pu, pv, ones = 148, 64, 168, 188, 192, 196
        for ksl in range(5):
            row = (0, 32, 80, 112, 0)[ksl]
            k = 1 if ksl == 4 else 0
            a(f"ds_read_b128 {q(sc+8*ksl)}, v{vT+k} offset:{row*4}")
            a(f"ds_read_b128 {q(sc+8*ksl+4)}, v{vT+k} offset:{row*4+16}")
            a(f"ds_read_b128 {q(sb+4*ksl)}, v{vT+2+k} offset:{row*2}")
        for d in range(4):
            a(f"v_mov_b32 v{ones+d}, 0x3f803f80")
        a("s_waitcnt lgkmcnt(0)")
        for ksl in range(5):
            a(f"v_mfma_f32_16x16x32_bf16 {q(pv)}, {q(f+4*ksl)}, {q(sb+4*ksl)}, {q(pv) if ksl else 0}")
            self.scale_frag(o + 4 * ksl, f + 4 * ksl, sc + 8 * ksl, vT + 12)
            a.vmem(f"buffer_store_dwordx4 {q(o+4*ksl)}, v{vSt}, {srd(S_WS)}, s{T[5] if ksl < 4 else T[9]} offen sc1", "stD")
            a(f"v_mfma_f32_16x16x32_bf16 {q(pu)}, {q(o+4*ksl)}, {q(ones)}, {q(pu) if ksl else 0}")
            if ksl < 3:
                a(f"s_add_u32 s{T[5]}, s{T[5]}, s{T[7]}")
        a.vmem(f"buffer_store_dwordx4 {q(pu)}, v{vT+4}, {srd(S_WS)}, s{T[8]} offen sc1", "stD")
        a.vmem(f"buffer_store_dwordx4 {q(pv)}, v{vT+4}, {srd(S_WS)}, s{T[8]} offen offset:896 sc1", "stD")
        self.publish(EV_WD, "stD")
        self.stamp()

    def ln_finish(self, s1, s2, t):
        a = self.a
        a(f"v_mul_f32 v{s1}, 0x3acccccd, v{s1}")
        a(f"v_mul_f32 v{s2}, 0x3acccccd, v{s2}")
        a(f"v_fma_f32 v{s2}, -v{s1}, v{s1}, v{s2}")
        a(f"v_max_f32 v{s2}, 0, v{s2}")
        a(f"v_add_f32 v{s2}, 0x3727c5ac, v{s2}")
        a(f"v_rsq_f32 v{s2}, v{s2}")
        a(f"v_mul_f32 v{s1}, v{s1}, v{s2}")
        a(f"v_sub_f32 v{s1}, 0, v{s1}")

    def finish(self):
        a = self.a
        if self.stamps:
            self.stamp()
            a(f"s_lshl_b32 s{T[0]}, s{sL}, 10")
            a(f"s_add_u32 s{T[0]}, s{T[0]}, {STAMP}")
            a(f"v_lshlrev_b32 v{vT+1}, 2, v0")
            a(f"buffer_store_dword v255, v{vT+1}, {srd(S_WS)}, s{T[0]} offen")
            a("s_load_dwordx2 s[4:5], s[0:1], 80")
            a("v_readlane_b32 s8, v255, 0")
            a("s_waitcnt lgkmcnt(0)")
            a(f"s_cmp_eq_u32 s{sL}, 100")
            a("s_cselect_b32 s6, 256, 0")
            a("s_mov_b32 s7, 0x20000")
            a("v_subrev_u32 v254, s8, v255")
            a(f"v_subrev_u32 v{vT+1}, 8, v{vT+1}")
            a(f"buffer_store_dword v254, v{vT+1}, s[4:7], 0 offen")
        a("L_end:")
        a("s_endpgm")

    def epoch_update(self):
        a = self.a
        a(f"s_cmp_eq_u32 s{sL}, 0")
        a(f"s_cselect_b32 s{T[0]}, 0, {OOB}")
        a.vmem(f"buffer_store_dword v{vNonce}, v{vFlag}, {srd(S_WS)}, s{T[0]} offen sc1", "flag")

    def build(self):
        import phases
        self.prologue()
        self.phase0()
        phases.rest(self)
        self.finish()
        body = self.a.text()
        hdr = open(f"cdna_kernels/{NAME}.s.ref").read().split("; Override")[0]
        return (hdr + f"; @launch grid=(256,1,1) block=(256,1,1) lds={LDS_BYTES}\n"
                '.amdgcn_target "amdgcn-amd-amdhsa--gfx950"\n.text\n'
                f".globl {NAME}_kernel\n.p2align 8\n.type {NAME}_kernel,@function\n{NAME}_kernel:\n"
                + body + "\n.fill 8192, 4, 0xbf800000\n"
                '.section .rodata,"a"\n.p2align 6\n'
                f".amdhsa_kernel {NAME}_kernel\n"
                "  .amdhsa_next_free_vgpr 512\n  .amdhsa_next_free_sgpr 102\n  .amdhsa_accum_offset 256\n"
                "  .amdhsa_group_segment_fixed_size 0\n  .amdhsa_kernarg_size 96\n  .amdhsa_user_sgpr_count 2\n"
                "  .amdhsa_user_sgpr_kernarg_segment_ptr 1\n  .amdhsa_system_sgpr_workgroup_id_x 1\n"
                "  .amdhsa_float_denorm_mode_32 3\n"
                ".end_amdhsa_kernel\n")


if __name__ == "__main__":
    import argparse
    p = argparse.ArgumentParser()
    p.add_argument("-o", default=f"cdna_kernels/{NAME}.s")
    p.add_argument("--stop", type=int, default=99)
    p.add_argument("--stamps", action="store_true")
    p.add_argument("--mapping", default="4x2")
    p.add_argument("--empties", type=int, default=0)
    args = p.parse_args()
    g = Gen(stop=args.stop, stamps=args.stamps, mapping=args.mapping)
    txt = g.build()
    if args.empties:
        line = f"; @launch grid=(256,1,1) block=(256,1,1) lds={LDS_BYTES}\n"
        new = f"; @launch kernel={NAME}_kernel grid=(256,1,1) block=(256,1,1) lds={LDS_BYTES}\n" + "; @launch kernel=e_kernel grid=(256,1,1) block=(256,1,1) lds=0\n" * (args.empties - 1)
        txt = txt.replace(line, new).replace("; Override", ";")
        txt = txt.replace('.section .rodata,"a"', '.p2align 8\n.globl e_kernel\n.type e_kernel,@function\ne_kernel:\n    s_endpgm\n.section .rodata,"a"')
        txt += ".p2align 6\n.amdhsa_kernel e_kernel\n  .amdhsa_next_free_vgpr 8\n  .amdhsa_next_free_sgpr 16\n  .amdhsa_accum_offset 8\n  .amdhsa_group_segment_fixed_size 0\n  .amdhsa_kernarg_size 96\n  .amdhsa_user_sgpr_count 2\n  .amdhsa_user_sgpr_kernarg_segment_ptr 1\n  .amdhsa_system_sgpr_workgroup_id_x 1\n.end_amdhsa_kernel\n"
    open(args.o, "w").write(txt)
    print("written", args.o, "instructions", len(g.a.L), "pads", g.a.npad)
```
